```python
import torch

def _softmax(x, axis=-1):
    return torch.softmax(x, dim=axis)
def _gelu(x):
    return torch.nn.functional.gelu(x, approximate="tanh")
def _silu(x):
    return torch.nn.functional.silu(x)
def _sigmoid(x):
    return torch.sigmoid(x)
def _layernorm(x, axis=-1, eps=1e-5):
    m = x.mean(dim=axis, keepdim=True)
    v = x.var(dim=axis, keepdim=True, unbiased=False)
    return (x - m) / torch.sqrt(v + eps)
def _scatter_add(tgt, idx, src, axis=0):
    return tgt.clone().index_add_(axis, idx, src)
def _segment_sum(src, seg, n):
    out = torch.zeros((n,) + src.shape[1:], dtype=src.dtype)
    return out.index_add_(0, seg, src)
def _pad(x, pw):
    flat = tuple(v for pair in reversed(pw) for v in pair)
    return torch.nn.functional.pad(x, flat)

kernel_name = 'concat_heads__gqa_block_cached__mha_block_cached__near_ridge'

def setup_inputs():

    _w = (lambda a: (lambda t: t.to(torch.bfloat16) if t.is_floating_point() else t)(torch.as_tensor(a)))
    def _A_setup():
        B, Sq, D = 16, 144, 640
        Hq, Hkv, Sk, Dh = 32, 32, 512, 192
        assert Hq % Hkv == 0, (Hq, Hkv)
        return {
            "x": _w((lambda *s: torch.randn(*s, dtype=torch.bfloat16) * 0.8)(B, Sq, D)),
            "k_cache": _w((lambda *s: torch.randn(*s, dtype=torch.bfloat16) * 0.8)(B, Hkv, Sk, Dh)),
            "v_cache": _w((lambda *s: torch.randn(*s, dtype=torch.bfloat16) * 0.05)(B, Hkv, Sk, Dh)),
            "wq": _w((lambda *s: torch.randn(*s, dtype=torch.bfloat16) * 0.8)(D, Hq * Dh) * (D ** -0.5)),
            "wo": _w((lambda *s: torch.randn(*s, dtype=torch.bfloat16) * 0.05)(Hq * Dh, D) * ((Hq * Dh) ** -0.5)),
        }
    _A_in = _A_setup()

    def _B_setup():
        B, Sq, D = 16, 144, 640
        H, Sk, Dh = 32, 512, 192
        return {
            "x": _w((lambda *s: torch.randn(*s, dtype=torch.bfloat16) * 0.8)(B, Sq, D)),
            "k_cache": _w((lambda *s: torch.randn(*s, dtype=torch.bfloat16) * 0.8)(B, H, Sk, Dh)),
            "v_cache": _w((lambda *s: torch.randn(*s, dtype=torch.bfloat16) * 0.05)(B, H, Sk, Dh)),
            "wq": _w((lambda *s: torch.randn(*s, dtype=torch.bfloat16) * 0.8)(D, H * Dh) * (D ** -0.5)),
            "wo": _w((lambda *s: torch.randn(*s, dtype=torch.bfloat16) * 0.05)(H * Dh, D) * ((H * Dh) ** -0.5)),
        }
    _B_in = _B_setup()

    return {
        "A_x": _A_in["x"],
        "A_k_cache": _A_in["k_cache"],
        "A_v_cache": _A_in["v_cache"],
        "A_wq": _A_in["wq"],
        "A_wo": _A_in["wo"],
        "B_x": _B_in["x"],
        "B_k_cache": _B_in["k_cache"],
        "B_v_cache": _B_in["v_cache"],
        "B_wq": _B_in["wq"],
        "B_wo": _B_in["wo"],
    }

def reference(A_x, A_k_cache, A_v_cache, A_wq, A_wo, B_x, B_k_cache, B_v_cache, B_wq, B_wo):
    def _A_ref(x, k_cache, v_cache, wq, wo):
        B, Sq, D = x.shape
        Hq, Dh = 32, 192
        Hkv = k_cache.shape[1]
        rep = Hq // Hkv
        q = (lambda x, *d: x.permute(*d))((x @ wq).reshape(B, Sq, Hq, Dh), 0, 2, 1, 3)
        k = (lambda x, n, axis: torch.repeat_interleave(x, n, dim=axis))(k_cache, rep, axis=1)
        v = (lambda x, n, axis: torch.repeat_interleave(x, n, dim=axis))(v_cache, rep, axis=1)
        scores = torch.einsum("bhqd,bhkd->bhqk", q, k) * (Dh ** -0.5)
        p = _softmax(scores, axis=-1)
        o = torch.einsum("bhqk,bhkd->bhqd", p, v)
        return (lambda x, *d: x.permute(*d))(o, 0, 2, 1, 3).reshape(B, Sq, Hq * Dh) @ wo

    def _B_ref(x, k_cache, v_cache, wq, wo):
        B, Sq, D = x.shape
        H, Dh = 32, 192
        q = (lambda x, *d: x.permute(*d))((x @ wq).reshape(B, Sq, H, Dh), 0, 2, 1, 3)
        scores = torch.einsum("bhqd,bhkd->bhqk", q, k_cache) * (Dh ** -0.5)
        p = _softmax(scores, axis=-1)
        o = torch.einsum("bhqk,bhkd->bhqd", p, v_cache)
        return (lambda x, *d: x.permute(*d))(o, 0, 2, 1, 3).reshape(B, Sq, H * Dh) @ wo

    a = _A_ref(A_x, A_k_cache, A_v_cache, A_wq, A_wo)
    b = _B_ref(B_x, B_k_cache, B_v_cache, B_wq, B_wo)
    return torch.concatenate([a, b], axis=-1)
```

```python
import re, struct

VCC = ('x', 0)
EXEC = ('x', 1)
M0 = ('x', 2)
SCC = ('x', 3)


def f32hex(x):
    return '0x%08x' % struct.unpack('<I', struct.pack('<f', x))[0]


def regs_of(op):
    op = op.strip()
    if op.startswith('-'):
        op = op[1:]
    if op.startswith('abs(') or op.startswith('|'):
        op = op.strip('|').replace('abs(', '').rstrip(')')
    m = re.fullmatch(r'([vas])(\d+)', op)
    if m:
        return [(m.group(1), int(m.group(2)))]
    m = re.fullmatch(r'([vas])\[(\d+):(\d+)\]', op)
    if m:
        return [(m.group(1), i) for i in range(int(m.group(2)), int(m.group(3)) + 1)]
    if op == 'vcc':
        return [VCC]
    if op == 'exec':
        return [EXEC]
    if op == 'm0':
        return [M0]
    return []


def V(i, n=1):
    return 'v%d' % i if n == 1 else 'v[%d:%d]' % (i, i + n - 1)


def A(i, n=1):
    return 'a%d' % i if n == 1 else 'a[%d:%d]' % (i, i + n - 1)


def S(i, n=1):
    return 's%d' % i if n == 1 else 's[%d:%d]' % (i, i + n - 1)


TRANS = ('v_exp_f32', 'v_log_f32', 'v_rcp_f32', 'v_rsq_f32', 'v_sqrt_f32')


class Em:
    def __init__(self):
        self.lines = []
        self.hist = []
        self.pos = 0
        self.lds = []
        self.vm = []
        self.nnop = 0

    def raw(self, t):
        self.lines.append(t)

    def comment(self, t):
        self.lines.append('    ; ' + t)

    def _nop(self, n):
        while n > 0:
            k = min(n, 16)
            self.lines.append('    s_nop %d' % (k - 1))
            self.pos += k
            self.nnop += k
            n -= k

    def _record(self, kind, rd, wr, **ex):
        self.hist.append(dict(kind=kind, rd=set(rd), wr=set(wr), pos=self.pos, **ex))
        self.pos += 1
        if len(self.hist) > 40:
            self.hist.pop(0)

    def _hazards(self, kind, rd, wr, ex):
        rd = set(rd)
        wr = set(wr)
        need = 0
        for h in self.hist:
            el = self.pos - h['pos'] - 1
            req = 0
            hk = h['kind']
            if hk in ('valu', 'trans'):
                vw = {r for r in h['wr'] if r[0] in 'va'}
                sw = {r for r in h['wr'] if r[0] == 's' or r == VCC}
                if kind == 'mfma' and vw & rd:
                    req = max(req, 2)
                if kind == 'perm' and vw & (rd | wr):
                    req = max(req, 2)
                if kind == 'rfl' and vw & rd:
                    req = max(req, 1)
                if hk == 'trans' and kind in ('valu', 'perm', 'rfl') and vw & rd:
                    req = max(req, 1)
                if sw & rd:
                    if kind in ('vmem', 'dma'):
                        req = max(req, 5)
                    elif kind in ('valu', 'trans', 'mfma'):
                        req = max(req, 2)
                    elif kind == 'salu':
                        req = max(req, 1)
            if hk == 'rfl':
                sw = {r for r in h['wr']}
                if sw & rd:
                    if kind in ('vmem', 'dma'):
                        req = max(req, 5)
                    elif kind in ('valu', 'trans'):
                        req = max(req, 2)
                    elif kind == 'salu':
                        req = max(req, 1)
            if hk == 'perm':
                vw = h['wr']
                if kind == 'mfma' and vw & rd:
                    req = max(req, 2)
                if kind == 'perm' and vw & (rd | wr):
                    req = max(req, 2)
            if hk == 'mfma':
                d = h['wr']
                if kind == 'mfma':
                    c = ex['c']
                    ab = ex['ab']
                    if d & ab:
                        req = max(req, 8)
                    if d & c and d != c:
                        req = max(req, 6)
                    if d & wr and not (d & c):
                        req = max(req, 8)
                elif kind in ('valu', 'trans', 'perm', 'rfl'):
                    if d & (rd | wr):
                        req = max(req, 8)
                    if h['c'] & wr:
                        req = max(req, 3)
                elif kind in ('vmem', 'dma', 'ds'):
                    if d & (rd | wr):
                        req = max(req, 8)
            if hk == 'salu':
                if M0 in h['wr'] and kind == 'dma':
                    req = max(req, 1)
            if hk == 'vmem' and h.get('wide_store'):
                if kind in ('valu', 'trans', 'perm') and h['data'] & wr:
                    req = max(req, 2)
                elif h['data'] & wr:
                    req = max(req, 1)
            need = max(need, req - el)
        if need > 0:
            self._nop(need)

    def _wait_regs(self, regs):
        regs = set(regs)
        idx = -1
        for i, d in enumerate(self.lds):
            if d & regs:
                idx = i
        if idx >= 0:
            n = len(self.lds) - 1 - idx
            n = min(n, 15)
            self.lines.append('    s_waitcnt lgkmcnt(%d)' % n)
            self.pos += 1
            self.lds = self.lds[len(self.lds) - n:] if n else []
        idx = -1
        for i, (t, d) in enumerate(self.vm):
            if d & regs:
                idx = i
        if idx >= 0:
            self._vmwait(len(self.vm) - 1 - idx)

    def _vmwait(self, n):
        n = min(n, 63)
        self.lines.append('    s_waitcnt vmcnt(%d)' % n)
        self.pos += 1
        self.vm = self.vm[len(self.vm) - n:] if n else []

    def _emit(self, kind, text, rd, wr, **ex):
        self._wait_regs(set(rd) | set(wr))
        self._hazards(kind, rd, wr, ex)
        self.lines.append('    ' + text)
        self._record(kind, rd, wr, **ex)

    def valu(self, op, dst, *srcs, mods='', rmw=False):
        rd = []
        for s in srcs:
            rd += regs_of(s)
        wr = regs_of(dst)
        if rmw:
            rd += wr
        kind = 'trans' if op in TRANS else 'valu'
        if op.startswith('v_cndmask') and len(srcs) == 2:
            rd.append(VCC)
        self._emit(kind, '%s %s%s%s' % (op, dst, ''.join(', ' + s for s in srcs), (' ' + mods) if mods else ''), rd, wr)

    def perm(self, op, a, b):
        r = regs_of(a) + regs_of(b)
        self._emit('perm', '%s %s, %s' % (op, a, b), r, r)

    def rfl(self, sdst, vsrc):
        self._emit('rfl', 'v_readfirstlane_b32 %s, %s' % (sdst, vsrc), regs_of(vsrc), regs_of(sdst))

    def mfma(self, d, a, b, c):
        ab = set(regs_of(a) + regs_of(b))
        cc = set(regs_of(c))
        self._emit('mfma', 'v_mfma_f32_16x16x32_bf16 %s, %s, %s, %s' % (d, a, b, c), ab | cc, regs_of(d), ab=ab, c=cc)

    def salu(self, op, dst, *srcs):
        rd = []
        for s in srcs:
            rd += regs_of(s)
        wr = regs_of(dst) if dst is not None else []
        ops = ([dst] if dst is not None else []) + list(srcs)
        self._emit('salu', '%s %s' % (op, ', '.join(ops)), rd, wr)

    def ds_read(self, op, dst, addr, off=0):
        assert 0 <= off < 65536, off
        self._emit('ds', '%s %s, %s%s' % (op, dst, addr, (' offset:%d' % off) if off else ''), regs_of(addr), regs_of(dst))
        self.lds.append(set(regs_of(dst)))

    def ds_write(self, op, addr, data, off=0):
        assert 0 <= off < 65536, off
        self._emit('ds', '%s %s, %s%s' % (op, addr, data, (' offset:%d' % off) if off else ''), regs_of(addr) + regs_of(data), [])
        self.lds.append(set())

    def dma(self, voff, srd, soff, off=0, tag=None, nt=False):
        assert 0 <= off < 4096
        rd = regs_of(voff) + regs_of(srd) + regs_of(soff) + [M0]
        self._emit('dma', 'buffer_load_dwordx4 %s, %s, %s offen%s%s lds' % (voff, srd, soff, (' offset:%d' % off) if off else '', ' nt' if nt else ''), rd, [])
        self.vm.append((tag, set()))

    def bload(self, op, dst, voff, srd, soff, off=0, tag=None):
        assert 0 <= off < 4096
        rd = regs_of(voff) + regs_of(srd) + regs_of(soff)
        self._emit('vmem', '%s %s, %s, %s, %s offen%s' % (op, dst, voff, srd, soff, (' offset:%d' % off) if off else ''), rd, regs_of(dst))
        self.vm.append((tag, set(regs_of(dst))))

    def bstore(self, op, data, voff, srd, soff, off=0, tag=None):
        assert 0 <= off < 4096
        rd = regs_of(voff) + regs_of(srd) + regs_of(soff) + regs_of(data)
        wide = op.endswith('x4') or op.endswith('x3')
        self._emit('vmem', '%s %s, %s, %s, %s offen%s' % (op, data, voff, srd, soff, (' offset:%d' % off) if off else ''), rd, [],
                   wide_store=wide, data=set(regs_of(data)))
        self.vm.append((tag, set()))

    def need(self, tags):
        tags = set(tags)
        idx = -1
        for i, (t, d) in enumerate(self.vm):
            if t in tags:
                idx = i
        if idx >= 0:
            self._vmwait(len(self.vm) - 1 - idx)

    def wait_lds(self):
        if self.lds:
            self.lines.append('    s_waitcnt lgkmcnt(0)')
            self.pos += 1
            self.lds = []

    def wait_vm0(self):
        self.lines.append('    s_waitcnt vmcnt(0)')
        self.pos += 1
        self.vm = []

    def barrier(self):
        self.wait_lds()
        self.lines.append('    s_barrier')
        self.pos += 1

    def flush_hazards(self):
        self._nop(10)
        self.hist = []

    def label(self, name):
        self.lines.append(name + ':')

    def text(self):
        return '\n'.join(self.lines) + '\n'
```

```python
import math, sys
from em import Em, V, A, S, f32hex

NAME = 'concat_heads__gqa_block_cached__mha_block_cached__near_ridge'

TILE = 24576
VW = 0
KR = 73728
PX = 122880
PXB = 18432
SML = 159744
SMM = SML + 2304
LDS1 = 163840
XBUF = [PX, PX + PXB, KR + TILE]
XBASE = KR + TILE

SCALE_C = (192 ** -0.5) * math.log2(math.e)


def weave(e, main, fills):
    nm = sum(1 for k, _ in main if k == 'm')
    after = {}
    for lo, hi, fl in fills:
        if not fl:
            continue
        hi = min(hi, nm - 1)
        lo = min(lo, hi)
        if nm == 0:
            after.setdefault(-1, []).extend(fl)
            continue
        span = hi - lo + 1
        for i, f in enumerate(fl):
            after.setdefault(lo + (i * span) // len(fl), []).append(f)
    for f in after.get(-1, []):
        f()
    i = 0
    for k, fn in main:
        fn()
        if k == 'm':
            for f in after.get(i, []):
                f()
            i += 1


class K1:
    sK, sVv, sW, sX, sO = 8, 12, 16, 20, 24
    sWv, sS, sW3, sW2 = 28, 29, 30, 31
    sBH, sHW, sXB, sOB, sCnt, sC = 32, 33, 34, 35, 36, 37
    sT = [38, 39, 40]
    sBHn, sHWn = 41, 42
    sPo, sSo = 43, 44
    st0, st1, st2 = 45, 46, 47

    def __init__(self, e, grp, dbg=None):
        self.e = e
        self.g = grp
        self.dbg = dbg
        if grp == 0:
            self.qts = [0, 1, 2, 3, 4]
            self.pts = [0, 1, 2, 3]
            self.rt0 = 0
        else:
            self.qts = [5, 6, 7, 8]
            self.pts = [4, 5, 6, 7, 8]
            self.rt0 = 4
        nq, np_ = len(self.qts), len(self.pts)
        self.nq, self.np = nq, np_
        self.QF = 0
        self.OA = nq * 24
        self.SS = self.OA + np_ * 12
        assert self.SS + nq * 4 <= 188
        r = 188
        self.KF = [r, r + 4]; r += 8
        self.VF = [r, r + 4, r + 8]; r += 12
        self.PF = [r, r + 4, r + 8]; r += 12
        self.mq = [r, r + 4]; r += 8
        self.m1 = [r, r + 1]; r += 2
        self.l = r; r += 5
        self.al = r; r += 5
        self.vLane = r; r += 1
        self.vKV = r; r += 1
        self.vW = r; r += 1
        self.vX = r; r += 1
        self.aK = [r, r + 1]; r += 2
        self.aV = [r, r + 1, r + 2]; r += 3
        self.aP = r; r += 1
        self.aPw = r; r += 1
        self.aM = r; r += 1
        self.t0 = r; r += 1
        self.t1 = r; r += 1
        self.t2 = r; r += 1
        self.t3 = r; r += 1
        assert r <= 256, r
        self.aX = self.aK
        self.aW = self.aV
        self.vslot = None

    def qf(self, iq, ks):
        return self.QF + iq * 24 + ks * 4

    def acc(self, iq, dt):
        return self.qf(iq, 3 + dt)

    def oa(self, ip, dt):
        return self.OA + ip * 12 + dt * 4

    def ss(self, iq):
        return self.SS + iq * 4

    def mreg(self, st, idx):
        return self.m1[st] if idx == 0 else self.mq[st] + idx - 1

    def dma_tile(self, kind, idx, nxt=False):
        e = self.e
        fns = []
        tag = (kind, idx, nxt)
        if kind == 'W':
            slot = VW + (idx % 3) * TILE
            base, add, srd, voff = (self.sHWn if nxt else self.sHW), idx * 786432, self.sW, self.vW
        elif kind == 'V':
            slot = VW + ((10 + idx) % 3) * TILE
            base, add, srd, voff = (self.sBHn if nxt else self.sBH), idx * TILE, self.sVv, self.vKV
        else:
            slot = KR + (idx & 1) * TILE
            base, add, srd, voff = (self.sBHn if nxt else self.sBH), idx * TILE, self.sK, self.vKV
        for i in range(3):
            def f(i=i):
                if i == 0:
                    e.salu('s_add_u32', S(self.st0), S(base), str(add))
                e.salu('s_add_u32', 'm0', S(self.sW3), str(slot + i * 1024 - i * 128))
                e.dma(V(voff), S(srd, 4), S(self.st0), off=i * 128, tag=tag)
            fns.append(f)
        return fns

    def xbuf(self, c):
        return XBUF[c % 3] if c <= 5 else XBUF[c & 1]

    def dma_x(self, c):
        e = self.e
        fns = []
        tag = ('x', c, False)
        for n in range(3):
            def f(n=n):
                e.salu('s_add_u32', S(self.st1), S(self.sXB), str(c * 128 + 9216 * n))
                if n == 0:
                    e.salu('s_add_u32', 'm0', S(self.sW2), str(self.xbuf(c)))
                if n == 2:
                    e.salu('s_mov_b64', 'exec', '0xffff')
                e.dma(V(self.vX), S(self.sX, 4), S(self.st1), off=n * 1024, tag=tag)
                if n == 2:
                    e.salu('s_mov_b64', 'exec', '-1')
            fns.append(f)
        return fns

    def dma_x_joined(self, c):
        fl = self.dma_x(c)

        def f():
            for x in fl:
                x()
        return [f]

    def lane_fields(self, q, g, r=None, c=None):
        e = self.e
        e.valu('v_and_b32', V(q), '15', V(self.vLane))
        e.valu('v_lshrrev_b32', V(g), '4', V(self.vLane))
        if r is not None:
            e.valu('v_bfe_u32', V(r), V(self.vLane), '2', '2')
            e.valu('v_and_b32', V(c), '3', V(self.vLane))

    def setup_tr_addr(self, dst, kindW):
        e = self.e
        q, g, r, c, sw, t, u, base = [self.KF[0] + i for i in range(8)]
        self.lane_fields(q, g, r, c)
        if kindW:
            e.valu('v_lshrrev_b32', V(sw), '1', V(r))
            e.valu('v_and_b32', V(t), '1', V(g))
            e.valu('v_lshl_add_u32', V(sw), V(t), '1', V(sw))
            e.valu('v_lshlrev_b32', V(sw), '1', V(sw))
            e.valu('v_mul_u32_u24', V(base), '3072', V(g))
            e.valu('v_lshl_add_u32', V(base), V(r), '7', V(base))
        else:
            e.valu('v_lshrrev_b32', V(sw), '1', V(r))
            e.valu('v_lshl_add_u32', V(sw), V(g), '1', V(sw))
            e.valu('v_and_b32', V(sw), '3', V(sw))
            e.valu('v_lshlrev_b32', V(sw), '1', V(sw))
            e.valu('v_lshrrev_b32', V(t), '1', V(g))
            e.valu('v_mul_u32_u24', V(base), '3072', V(t))
            e.valu('v_and_b32', V(t), '1', V(g))
            e.valu('v_lshl_add_u32', V(t), V(t), '2', V(r))
            e.valu('v_lshl_add_u32', V(base), V(t), '7', V(base))
        e.valu('v_and_b32', V(t), '1', V(c))
        e.valu('v_lshl_add_u32', V(base), V(t), '3', V(base))
        e.valu('v_lshrrev_b32', V(c), '1', V(c))
        for dt in range(3):
            e.salu('s_lshl_b32', S(self.st0), S(self.sT[dt]), '1')
            e.valu('v_add_u32', V(t), S(self.st0), V(c))
            e.valu('v_lshrrev_b32', V(u), '3', V(t))
            e.valu('v_and_b32', V(t), '7', V(t))
            e.valu('v_xor_b32', V(t), V(t), V(sw))
            e.valu('v_lshl_add_u32', V(t), V(t), '4', V(base))
            e.valu('v_lshl_add_u32', V(dst[dt]), V(u), '10', V(t))

    def setup_qproj_addr(self):
        e = self.e
        self.setup_tr_addr(self.aW, True)
        q, g, sw, t = [self.KF[0] + i for i in range(4)]
        self.lane_fields(q, g)
        e.valu('v_and_b32', V(sw), '6', V(q))
        e.valu('v_xor_b32', V(t), V(g), V(sw))
        e.valu('v_lshlrev_b32', V(t), '4', V(t))
        e.valu('v_lshl_add_u32', V(t), V(q), '7', V(t))
        e.valu('v_add_u32', V(self.aX[0]), str(XBASE), V(t))
        e.valu('v_xor_b32', V(self.aX[1]), '64', V(self.aX[0]))

    def setup_attn_addr(self):
        e = self.e
        self.setup_tr_addr(self.aV, False)
        self.vslot = 0
        q, g, sw, t, u = [self.KF[0] + i for i in range(5)]
        self.lane_fields(q, g)
        e.valu('v_and_b32', V(sw), '6', V(q))
        e.valu('v_xor_b32', V(t), V(g), V(sw))
        e.valu('v_lshlrev_b32', V(t), '4', V(t))
        e.valu('v_and_b32', V(u), '7', V(q))
        e.valu('v_lshl_add_u32', V(t), V(u), '7', V(t))
        e.valu('v_lshrrev_b32', V(u), '3', V(q))
        e.valu('v_mul_u32_u24', V(u), '3072', V(u))
        e.salu('s_mul_i32', S(self.st0), S(self.sS), '6144')
        e.salu('s_add_u32', S(self.st0), S(self.st0), str(KR))
        e.valu('v_add3_u32', V(self.aK[0]), V(t), V(u), S(self.st0))
        e.valu('v_xor_b32', V(self.aK[1]), '64', V(self.aK[0]))

    def set_vslot(self, slot):
        e = self.e
        d = slot - self.vslot
        if d:
            for dt in range(3):
                if d > 0:
                    e.valu('v_add_u32', V(self.aV[dt]), str(d), V(self.aV[dt]))
                else:
                    e.valu('v_subrev_u32', V(self.aV[dt]), str(-d), V(self.aV[dt]))
            self.vslot = slot

    def seg_q(self, c):
        e = self.e
        nq = self.nq
        e.comment('---- Q seg %d' % c)
        if c == 0:
            self.setup_qproj_addr()
            t = self.KF[0]
            e.valu('v_mov_b32', V(t), '0xff800000')
            e.valu('v_mov_b32', V(t + 1), '0xff800000')
            e.valu('v_lshlrev_b32', V(t + 2), '3', V(self.vLane))
            e.valu('v_add_u32', V(t + 2), str(SMM), V(t + 2))
            for k in range(3):
                e.ds_write('ds_write_b64', V(t + 2), V(t, 2), off=512 * k)
        slot = VW + (c % 3) * TILE
        xo = self.xbuf(c) - XBASE
        WF = [self.OA, self.OA + 12]
        XF = [self.OA + 24, self.OA + 28, self.OA + 32]
        dm = []
        if c + 2 <= 9:
            dm += self.dma_tile('W', c + 2)
        else:
            dm += self.dma_tile('V', c - 8)
        xs = {0: 1, 1: 3, 2: 4, 3: 5, 4: 6, 5: 7, 7: 8, 8: 9}
        if c in xs:
            dm += self.dma_x_joined(xs[c])
        if c == 1:
            dm += self.dma_tile('K', 0)
        if c == 6:
            dm += self.dma_tile('K', 1)
        main = []

        def ldw(ks, dt):
            def f():
                e.ds_read('ds_read_b64_tr_b16', V(WF[ks] + dt * 4, 2), V(self.aW[dt]), off=slot + ks * 12288)
                e.ds_read('ds_read_b64_tr_b16', V(WF[ks] + dt * 4 + 2, 2), V(self.aW[dt]), off=slot + ks * 12288 + 512)
            return f

        def ldx(idx):
            ks, iq = divmod(idx, nq)

            def f():
                e.ds_read('ds_read_b128', V(XF[idx % 3], 4), V(self.aX[ks]), off=xo + self.qts[iq] * 2048)
            return f
        for dt in range(3):
            main.append(('o', ldw(0, dt)))
        for idx in range(3):
            main.append(('o', ldx(idx)))
        for dt in range(3):
            main.append(('o', ldw(1, dt)))
        for idx in range(2 * nq):
            ks, iq = divmod(idx, nq)
            for dt in range(3):
                def f(ks=ks, iq=iq, dt=dt, idx=idx):
                    a = self.acc(iq, dt)
                    e.mfma(V(a, 4), V(WF[ks] + dt * 4, 4), V(XF[idx % 3], 4), '0' if (c == 0 and ks == 0) else V(a, 4))
                main.append(('m', f))
            if idx + 3 < 2 * nq:
                main.append(('o', ldx(idx + 3)))
        weave(e, main, [(1, 6 * nq - 4, dm)])
        if c < 9:
            e.need([('W', c + 1, False), ('x', c + 1, False)])
            e.barrier()

    def exchange(self):
        e = self.e
        nq = self.nq
        for iq in range(nq):
            for dt in range(3):
                a = self.acc(iq, dt)
                e.valu('v_cvt_pk_bf16_f32', V(a), V(a), V(a + 1))
                e.valu('v_cvt_pk_bf16_f32', V(a + 1), V(a + 2), V(a + 3))
        q, g, base = self.KF[0], self.KF[0] + 1, self.KF[0] + 2
        aQw = [self.KF[0] + 3, self.KF[0] + 4, self.KF[0] + 5]
        aQr = self.KF[0] + 6
        self.lane_fields(q, g)
        e.valu('v_mul_u32_u24', V(base), '192', V(q))
        e.valu('v_add_u32', V(base), str(PX), V(base))
        e.valu('v_lshl_add_u32', V(aQr), V(g), '4', V(base))
        e.valu('v_lshl_add_u32', V(base), V(g), '3', V(base))
        for dt in range(3):
            e.salu('s_sub_u32', S(self.st0), S(self.sT[dt]), '6')
            e.salu('s_cmp_ge_u32', None, S(self.sT[dt]), '6')
            e.salu('s_cselect_b32', S(self.st0), S(self.st0), S(self.sT[dt]))
            e.salu('s_lshl_b32', S(self.st0), S(self.st0), '5')
            e.valu('v_add_u32', V(aQw[dt]), S(self.st0), V(base))

        def wr_block(lab, ge):
            e.salu('s_cmp_ge_u32', None, S(self.sS), '2')
            e.raw('    s_cbranch_scc%d %s' % (0 if ge else 1, lab))
            for iq in range(nq):
                for dt in range(3):
                    e.ds_write('ds_write_b64', V(aQw[dt]), V(self.acc(iq, dt), 2), off=self.qts[iq] * 3072)
            e.wait_lds()
            e.label(lab)
            e.flush_hazards()
        wr_block('L_exA_%d' % self.g, False)
        e.barrier()
        for f in self.dma_tile('V', 2):
            f()
        for iq in range(nq):
            for ks in range(3):
                e.ds_read('ds_read_b128', V(self.qf(iq, ks), 4), V(aQr), off=self.qts[iq] * 3072 + ks * 64)
        e.barrier()
        wr_block('L_exB_%d' % self.g, True)
        e.need([('K', 0, False)])
        e.barrier()
        for iq in range(nq):
            for ks in range(3):
                e.ds_read('ds_read_b128', V(self.qf(iq, 3 + ks), 4), V(aQr), off=self.qts[iq] * 3072 + ks * 64)
        e.wait_lds()
        self.setup_attn_addr()
        for idx in range(5):
            e.valu('v_mov_b32', V(self.mreg(1, idx)), '0xff800000')
            e.valu('v_mov_b32', V(self.l + idx), '0')

    def seg_a(self, j):
        e = self.e
        nq, np_ = self.nq, self.np
        doB = 0 <= j <= 7
        doC = 1 <= j <= 8
        doA = -1 <= j <= 6
        e.comment('---- attn seg %d' % j)
        dm = []
        if 0 <= j <= 5:
            dm += self.dma_tile('K', j + 2)
        if 2 <= j <= 6:
            dm += self.dma_tile('V', j + 1)
        if j == 7:
            dm += self.dma_tile('W', 0, True)
        if j == 8:
            dm += self.dma_tile('W', 1, True)
            dm += self.dma_x_joined(0)
            dm += self.dma_x_joined(2)
        new, old = (j & 1), ((j + 1) & 1)
        fB = []
        if doB:
            mo = SMM + (j & 1) * 768
            e.ds_read('ds_read_b32', V(self.m1[new]), V(self.aM), off=mo - SMM + (3 + self.rt0) * 4)
            e.ds_read('ds_read_b128', V(self.mq[new], 4), V(self.aM), off=mo - SMM + (4 + self.rt0) * 4)
            for idx in range(5):
                mn, mo_, al = self.mreg(new, idx), self.mreg(old, idx), self.al + idx
                fB.append(lambda mn=mn: e.valu('v_mul_f32', V(mn), S(self.sC), V(mn)))
            for idx in range(5):
                mn, mo_, al = self.mreg(new, idx), self.mreg(old, idx), self.al + idx
                fB.append(lambda mn=mn, mo_=mo_: e.valu('v_max_f32', V(mn), V(mn), V(mo_)))
            for idx in range(5):
                mn, mo_, al = self.mreg(new, idx), self.mreg(old, idx), self.al + idx
                fB.append(lambda mn=mn, mo_=mo_, al=al: e.valu('v_sub_f32', V(al), V(mo_), V(mn)))
            for idx in range(5):
                al = self.al + idx
                fB.append(lambda al=al: e.valu('v_exp_f32', V(al), V(al)))
            for iq in range(nq):
                idx = self.qts[iq] - self.rt0
                s0 = self.ss(iq)
                for i in range(4):
                    fB.append(lambda s0=s0, i=i, idx=idx: e.valu('v_fma_f32', V(s0 + i), V(s0 + i), S(self.sC), '-' + V(self.mreg(new, idx))))
            for iq in range(nq):
                idx = self.qts[iq] - self.rt0
                s0 = self.ss(iq)
                lr = self.l + idx
                for i in range(4):
                    fB.append(lambda s0=s0, i=i: e.valu('v_exp_f32', V(s0 + i), V(s0 + i)))
            for iq in range(nq):
                idx = self.qts[iq] - self.rt0
                s0 = self.ss(iq)
                lr = self.l + idx
                fB.append(lambda s0=s0, lr=lr, idx=idx: e.valu('v_fma_f32', V(lr), V(lr), V(self.al + idx), V(s0)))
                fB.append(lambda s0=s0: e.valu('v_add_f32', V(self.t0), V(s0 + 1), V(s0 + 2)))
                fB.append(lambda s0=s0, lr=lr: e.valu('v_add_f32', V(lr), V(lr), V(s0 + 3)))
                fB.append(lambda s0=s0: e.valu('v_cvt_pk_bf16_f32', V(s0), V(s0), V(s0 + 1)))
                fB.append(lambda lr=lr: e.valu('v_add_f32', V(lr), V(lr), V(self.t0)))
                fB.append(lambda s0=s0: e.valu('v_cvt_pk_bf16_f32', V(s0 + 1), V(s0 + 2), V(s0 + 3)))
                fB.append(lambda s0=s0, iq=iq: e.ds_write('ds_write_b64', V(self.aPw), V(s0, 2), off=(j & 1) * PXB + self.qts[iq] * 2048))
        mainC = []
        kslot = ((j + 1) & 1) * TILE
        KB = [self.KF[0], self.KF[1], self.PF[0], self.PF[1], self.PF[2], self.KF[0]]

        def ldk(ks):
            def f():
                e.ds_read('ds_read_b128', V(KB[ks], 4), V(self.aK[ks & 1]), off=kslot + (ks >> 1) * 1024)
            return f
        if doC:
            self.set_vslot(VW + ((10 + j - 1) % 3) * TILE)
            pbuf = ((j - 1) & 1) * PXB

            def ldv(k, dt):
                def f():
                    e.ds_read('ds_read_b64_tr_b16', V(self.VF[dt], 2), V(self.aV[dt]), off=(4 * k) * 3072)
                    e.ds_read('ds_read_b64_tr_b16', V(self.VF[dt] + 2, 2), V(self.aV[dt]), off=(4 * k + 2) * 3072)
                return f

            def ldp(idx):
                k, ip = divmod(idx, np_)

                def f():
                    e.ds_read('ds_read_b128', V(self.PF[idx % 3], 4), V(self.aP), off=pbuf + (self.pts[ip] * 2 + k) * 1024)
                return f
            for dt in range(3):
                mainC.append(('o', ldv(0, dt)))
            for idx in range(3):
                mainC.append(('o', ldp(idx)))
            if doA:
                mainC.append(('o', ldk(0)))
                mainC.append(('o', ldk(1)))
            for idx in range(2 * np_):
                k, ip = divmod(idx, np_)
                for dt in range(3):
                    def f(k=k, ip=ip, dt=dt, idx=idx):
                        o = self.oa(ip, dt)
                        e.mfma(V(o, 4), V(self.VF[dt], 4), V(self.PF[idx % 3], 4), '0' if (j == 1 and k == 0) else V(o, 4))
                    mainC.append(('m', f))
                    if k == 0 and ip == np_ - 1:
                        mainC.append(('o', ldv(1, dt)))
                if idx + 3 < 2 * np_:
                    mainC.append(('o', ldp(idx + 3)))
            weave(e, mainC, [(0, 6 * np_ - 2, fB), (2, 6 * np_ - 3, dm)])
            dm = []
        else:
            if doA:
                ldk(0)()
                ldk(1)()
            for f in fB:
                f()
        if j == 7:
            self.l_exchange()
        fR = []
        if doB and j >= 1:
            for ip in range(np_):
                idx = self.pts[ip] - self.rt0
                for dt in range(3):
                    for i in range(4):
                        o = self.oa(ip, dt) + i
                        fR.append(lambda o=o, idx=idx: e.valu('v_mul_f32', V(o), V(self.al + idx), V(o)))
        if doA:
            mainA = []
            for ks in range(2, 5):
                mainA.append(('o', ldk(ks)))
            for ks in range(6):
                for iq in range(nq):
                    def f(ks=ks, iq=iq):
                        s0 = self.ss(iq)
                        e.mfma(V(s0, 4), V(KB[ks], 4), V(self.qf(iq, ks), 4), '0' if ks == 0 else V(s0, 4))
                    mainA.append(('m', f))
                if ks == 0:
                    mainA.append(('o', ldk(5)))
            weave(e, mainA, [(1, 6 * nq - 1, fR), (0, 6 * nq - 2, dm)])
            dm = []
            mo = ((j + 1) & 1) * 768
            for iq in range(nq):
                s0 = self.ss(iq)
                t = self.t0 if iq & 1 else self.t1
                e.valu('v_max3_f32', V(t), V(s0), V(s0 + 1), V(s0 + 2))
                e.valu('v_max_f32', V(t), V(t), V(s0 + 3))
                e.ds_write('ds_max_f32', V(self.aM), V(t), off=mo + (3 + self.qts[iq]) * 4)
        else:
            for f in fR:
                f()
            for f in dm:
                f()
        if j == 8:
            self.epilogue()
        nd = []
        if j + 1 <= 6:
            nd.append(('K', j + 2, False))
        if 1 <= j + 1 <= 8:
            nd.append(('V', j, False))
        if j == 8:
            nd = [('W', 0, True), ('x', 0, False)]
        e.need(nd)
        e.barrier()

    def l_exchange(self):
        e = self.e
        idxs = [qt - self.rt0 for qt in self.qts]
        q, g, ad = self.QF, self.QF + 1, self.QF + 2
        self.lane_fields(q, g)
        pack = idxs[-4:]
        a, b, c, d = [self.l + i for i in pack]
        e.perm('v_permlane16_swap_b32', V(a), V(b))
        e.perm('v_permlane16_swap_b32', V(c), V(d))
        e.valu('v_add_f32', V(a), V(a), V(b))
        e.valu('v_add_f32', V(c), V(c), V(d))
        e.perm('v_permlane32_swap_b32', V(a), V(c))
        e.valu('v_add_f32', V(a), V(a), V(c))
        rtp = pack[0] + self.rt0
        e.salu('s_lshl_b32', S(self.st0), S(self.sS), '2')
        e.salu('s_add_u32', S(self.st0), S(self.st0), str(SML))
        e.valu('v_lshlrev_b32', V(ad), '4', V(q))
        e.valu('v_add_u32', V(ad), S(self.st0), V(ad))
        e.valu('v_lshl_add_u32', V(ad + 1), V(g), '8', V(ad))
        e.ds_write('ds_write_b32', V(ad + 1), V(a), off=rtp * 256)
        if len(idxs) == 5:
            x = self.l + idxs[0]
            y = self.QF + 5
            e.valu('v_mov_b32', V(y), V(x))
            e.perm('v_permlane16_swap_b32', V(x), V(y))
            e.valu('v_add_f32', V(x), V(x), V(y))
            e.valu('v_mov_b32', V(y), V(x))
            e.perm('v_permlane32_swap_b32', V(x), V(y))
            e.valu('v_add_f32', V(x), V(x), V(y))
            e.ds_write('ds_write_b32', V(ad), V(x), off=(idxs[0] + self.rt0) * 256)

    def epilogue(self):
        e = self.e
        np_ = self.np
        q, ad, vo = self.QF, self.QF + 1, self.QF + 2
        e.valu('v_and_b32', V(q), '15', V(self.vLane))
        e.valu('v_lshlrev_b32', V(ad), '4', V(q))
        e.valu('v_add_u32', V(ad), str(SML), V(ad))
        e.valu('v_lshlrev_b32', V(vo), '4', V(self.vLane))
        L = self.QF + 4
        for ip in range(np_):
            e.ds_read('ds_read_b128', V(L + ip * 4, 4), V(ad), off=self.pts[ip] * 256)
        for ip in range(np_):
            x = L + ip * 4
            e.valu('v_add_f32', V(x), V(x), V(x + 1))
            e.valu('v_add_f32', V(x + 2), V(x + 2), V(x + 3))
            e.valu('v_add_f32', V(x), V(x), V(x + 2))
            e.valu('v_rcp_f32', V(x), V(x))
        for ip in range(np_):
            x = L + ip * 4
            o = self.oa(ip, 0)
            for i in range(12):
                e.valu('v_mul_f32', V(o + i), V(x), V(o + i))
            for i in range(6):
                e.valu('v_cvt_pk_bf16_f32', V(o + i), V(o + 2 * i), V(o + 2 * i + 1))
            rt = self.pts[ip]
            e.salu('s_add_u32', S(self.st0), S(self.sOB), S(self.sPo))
            e.salu('s_add_u32', S(self.st1), S(self.sOB), S(self.sSo))
            if rt >> 2:
                e.salu('s_add_u32', S(self.st0), S(self.st0), str((rt >> 2) * 4096))
                e.salu('s_add_u32', S(self.st1), S(self.st1), str((rt >> 2) * 4096))
            e.bstore('buffer_store_dwordx4', V(o, 4), V(vo), S(self.sO, 4), S(self.st0), off=(rt & 3) * 1024, tag='ost')
            e.bstore('buffer_store_dwordx2', V(o + 4, 2), V(vo), S(self.sO, 4), S(self.st1), off=(rt & 3) * 1024, tag='ost')

    def head(self):
        for c in range(10):
            self.seg_q(c)
        self.exchange()
        for j in range(-1, 9):
            self.seg_a(j)

    def retag(self):
        self.e.vm = [((t[0], t[1], False) if isinstance(t, tuple) else t, d) for t, d in self.e.vm]

    def body(self):
        e = self.e
        g = self.g
        ln, t, u = self.vLane, self.t0, self.t1
        e.valu('v_and_b32', V(ln), '63', 'v0')
        e.valu('v_lshrrev_b32', V(t), '3', V(ln))
        e.valu('v_lshrrev_b32', V(u), '4', V(ln))
        e.valu('v_lshlrev_b32', V(u), '1', V(u))
        e.valu('v_and_b32', V(self.t2), '7', V(ln))
        e.valu('v_xor_b32', V(u), V(u), V(self.t2))
        e.valu('v_lshlrev_b32', V(u), '4', V(u))
        e.valu('v_mul_u32_u24', V(self.vKV), '384', V(t))
        e.valu('v_add3_u32', V(self.vKV), V(self.vKV), V(u), S(self.sW3))
        e.salu('s_and_b32', S(self.st0), S(self.sWv), '1')
        e.salu('s_lshl_b32', S(self.st0), S(self.st0), '2')
        e.valu('v_bfe_u32', V(u), V(ln), '4', '1')
        e.valu('v_lshlrev_b32', V(u), '1', V(u))
        e.valu('v_or_b32', V(u), S(self.st0), V(u))
        e.valu('v_xor_b32', V(u), V(u), V(self.t2))
        e.valu('v_lshlrev_b32', V(u), '4', V(u))
        e.valu('v_mul_u32_u24', V(self.vW), '12288', V(t))
        e.salu('s_mul_i32', S(self.st0), S(self.sWv), '98304')
        e.valu('v_add3_u32', V(self.vW), V(self.vW), V(u), S(self.st0))
        e.salu('s_mul_i32', S(self.st0), S(self.sWv), '9')
        e.valu('v_lshrrev_b32', V(u), '4', V(ln))
        e.valu('v_add_u32', V(u), S(self.st0), V(u))
        e.valu('v_and_b32', V(u), '3', V(u))
        e.valu('v_lshlrev_b32', V(u), '1', V(u))
        e.valu('v_xor_b32', V(u), V(u), V(self.t2))
        e.valu('v_lshlrev_b32', V(u), '4', V(u))
        e.valu('v_mul_u32_u24', V(self.vX), '1280', V(t))
        e.salu('s_mul_i32', S(self.st0), S(self.sWv), '23040')
        e.valu('v_add3_u32', V(self.vX), V(self.vX), V(u), S(self.st0))
        e.valu('v_lshlrev_b32', V(t), '4', V(ln))
        e.valu('v_add_u32', V(self.aP), str(PX), V(t))
        e.salu('s_and_b32', S(self.st0), S(self.sS), '1')
        e.salu('s_lshl_b32', S(self.st0), S(self.st0), '3')
        e.salu('s_lshr_b32', S(self.st1), S(self.sS), '1')
        e.salu('s_lshl_b32', S(self.st1), S(self.st1), '10')
        e.salu('s_add_u32', S(self.st0), S(self.st0), S(self.st1))
        e.valu('v_add_u32', V(self.aPw), S(self.st0), V(self.aP))
        e.valu('v_and_b32', V(t), '15', V(ln))
        e.valu('v_mul_u32_u24', V(t), '48', V(t))
        e.valu('v_add_u32', V(self.aM), str(SMM), V(t))
        for f in self.dma_tile('W', 0) + self.dma_tile('W', 1) + self.dma_x_joined(0) + self.dma_x_joined(2):
            f()
        e.wait_vm0()
        e.barrier()
        save = (e.lines, e.hist, e.pos, e.lds, e.vm, self.vslot)
        e.lines, e.hist, e.lds, e.vm = [], [], [], []
        self.head()
        self.retag()
        inq = list(e.vm)
        e.lines, e.hist, e.pos, e.lds, e.vm, self.vslot = save
        e.vm = list(inq)
        e.flush_hazards()
        e.label('L_head_%d' % g)
        self.head()
        self.retag()
        assert [t for t, _ in e.vm] == [t for t, _ in inq], (e.vm, inq)
        e.salu('s_mov_b32', S(self.sBH), S(self.sBHn))
        e.salu('s_mov_b32', S(self.sHW), S(self.sHWn))
        e.salu('s_add_u32', S(self.sBHn), S(self.sBHn), '196608')
        e.salu('s_add_u32', S(self.sHWn), S(self.sHWn), '384')
        e.salu('s_add_u32', S(self.sOB), S(self.sOB), str(6 * 9216))
        e.salu('s_add_u32', S(self.sCnt), S(self.sCnt), '1')
        e.flush_hazards()
        e.salu('s_cmp_lt_u32', None, S(self.sCnt), '4')
        e.raw('    s_cbranch_scc1 L_head_%d' % g)
        e.raw('    s_endpgm')


def srd(e, d, lo, hi, nbytes):
    e.salu('s_mov_b32', S(d), S(lo))
    e.salu('s_and_b32', S(d + 1), S(hi), '0xffff')
    e.salu('s_mov_b32', S(d + 2), str(nbytes))
    e.salu('s_mov_b32', S(d + 3), '0x00020000')


def gen_k1():
    e = Em()
    k = K1
    e.raw('.p2align 8')
    e.raw('attn_kernel:')
    e.salu('s_cmp_ge_u32', None, 's2', '256')
    e.raw('    s_cbranch_scc1 L_k1_exit')
    e.raw('    s_load_dwordx8 s[48:55], s[0:1], 0')
    e.raw('    s_load_dwordx8 s[56:63], s[0:1], 40')
    e.raw('    s_load_dwordx2 s[64:65], s[0:1], 96')
    e.salu('s_and_b32', 's3', 's2', '7')
    e.salu('s_lshr_b32', 's4', 's2', '3')
    e.salu('s_lshr_b32', 's5', 's3', '2')
    e.salu('s_and_b32', 's6', 's3', '3')
    e.salu('s_lshr_b32', 's7', 's6', '1')
    e.salu('s_lshl_b32', 's7', 's7', '3')
    e.salu('s_lshr_b32', 's66', 's4', '2')
    e.salu('s_add_u32', 's7', 's7', 's66')
    e.salu('s_and_b32', 's66', 's6', '1')
    e.salu('s_lshl_b32', 's66', 's66', '2')
    e.salu('s_and_b32', 's67', 's4', '3')
    e.salu('s_add_u32', 's66', 's66', 's67')
    e.salu('s_lshl_b32', 's66', 's66', '2')
    e.raw('    s_waitcnt lgkmcnt(0)')
    e.salu('s_cmp_eq_u32', None, 's5', '0')
    for i in range(8):
        e.salu('s_cselect_b32', S(48 + i), S(48 + i), S(56 + i))
    srd(e, k.sX, 48, 49, 2949120)
    srd(e, k.sK, 50, 51, 100663296)
    srd(e, k.sVv, 52, 53, 100663296)
    srd(e, k.sW, 54, 55, 7864320)
    srd(e, k.sO, 64, 65, 56623104)
    e.valu('v_lshrrev_b32', 'v1', '6', 'v0')
    e.rfl(S(k.sWv), 'v1')
    e.salu('s_and_b32', S(k.sS), S(k.sWv), '3')
    e.salu('s_mul_i32', S(k.sW3), S(k.sWv), '3072')
    e.salu('s_mul_i32', S(k.sW2), S(k.sWv), '2304')
    e.salu('s_lshl_b32', 's67', 's7', '5')
    e.salu('s_add_u32', 's67', 's67', 's66')
    e.salu('s_mul_i32', S(k.sBH), 's67', '196608')
    e.salu('s_add_u32', S(k.sBHn), S(k.sBH), '196608')
    e.salu('s_mul_i32', S(k.sHW), 's66', '384')
    e.salu('s_add_u32', S(k.sHWn), S(k.sHW), '384')
    e.salu('s_mul_i32', S(k.sXB), 's7', '184320')
    e.salu('s_lshl_b32', 's67', 's5', '4')
    e.salu('s_add_u32', 's67', 's67', 's7')
    e.salu('s_mul_i32', 's67', 's67', '192')
    e.salu('s_mul_i32', 's68', 's66', '6')
    e.salu('s_add_u32', 's67', 's67', 's68')
    e.salu('s_mul_i32', S(k.sOB), 's67', '9216')
    e.salu('s_mov_b32', S(k.sCnt), '0')
    e.salu('s_mov_b32', S(k.sC), f32hex(SCALE_C))
    e.salu('s_mul_i32', 's67', S(k.sS), '3')
    e.salu('s_and_b32', 's68', S(k.sS), '1')
    e.salu('s_add_u32', S(k.sT[0]), 's67', 's68')
    e.salu('s_add_u32', S(k.sT[1]), S(k.sT[0]), '1')
    e.salu('s_add_u32', S(k.sT[2]), 's67', '2')
    e.salu('s_cmp_eq_u32', None, 's68', '1')
    e.salu('s_cselect_b32', S(k.sT[2]), 's67', S(k.sT[2]))
    e.salu('s_lshr_b32', 's67', S(k.sT[0]), '1')
    e.salu('s_mul_i32', S(k.sPo), 's67', '9216')
    e.salu('s_lshr_b32', 's67', S(k.sT[2]), '1')
    e.salu('s_mul_i32', S(k.sSo), 's67', '9216')
    e.salu('s_and_b32', 's67', S(k.sT[2]), '1')
    e.salu('s_lshl_b32', 's67', 's67', '3')
    e.salu('s_add_u32', S(k.sSo), S(k.sSo), 's67')
    e.salu('s_cmp_ge_u32', None, S(k.sWv), '4')
    e.raw('    s_cbranch_scc1 L_grp1')
    e.flush_hazards()
    K1(e, 0).body()
    e.label('L_grp1')
    e.flush_hazards()
    e.lds, e.vm = [], []
    K1(e, 1).body()
    e.label('L_k1_exit')
    e.raw('    s_endpgm')
    return e.text()


def gen_k2():
    e = Em()
    e.raw('.p2align 8')
    e.raw('oproj_kernel:')
    e.salu('s_cmp_ge_u32', None, 's2', '256')
    e.raw('    s_cbranch_scc1 L_k2_exit')
    e.raw('    s_load_dwordx2 s[4:5], s[0:1], 32')
    e.raw('    s_load_dwordx2 s[6:7], s[0:1], 72')
    e.raw('    s_load_dwordx2 s[8:9], s[0:1], 80')
    e.raw('    s_load_dwordx2 s[10:11], s[0:1], 96')
    sWo, sOw, sOut = 12, 16, 20
    sWv, sBlk, sB, sNs, sO0, sO1, sO2, sWoff, sCnt, sLb, sOo, st = 24, 25, 26, 27, 28, 29, 30, 31, 32, 33, 34, 35
    e.salu('s_and_b32', 's3', 's2', '7')
    e.salu('s_lshr_b32', 's36', 's2', '3')
    e.salu('s_lshr_b32', S(sBlk), 's3', '2')
    e.salu('s_and_b32', 's3', 's3', '3')
    e.salu('s_lshl_b32', 's3', 's3', '2')
    e.salu('s_lshr_b32', S(sB), 's36', '3')
    e.salu('s_add_u32', S(sB), S(sB), 's3')
    e.salu('s_and_b32', S(sNs), 's36', '7')
    e.raw('    s_waitcnt lgkmcnt(0)')
    e.salu('s_cmp_eq_u32', None, S(sBlk), '0')
    e.salu('s_cselect_b32', 's4', 's4', 's6')
    e.salu('s_cselect_b32', 's5', 's5', 's7')
    srd(e, sWo, 4, 5, 7864320)
    srd(e, sOw, 10, 11, 56623104)
    srd(e, sOut, 8, 9, 5898240)
    e.valu('v_lshrrev_b32', 'v1', '6', 'v0')
    e.rfl(S(sWv), 'v1')
    OF = lambda stg, rt: stg * 36 + rt * 4
    WF = lambda buf, nt: 144 + buf * 20 + nt * 4
    vWo = [184 + i for i in range(5)]
    vOo, aT, vL, t0, t1, t2 = 189, 190, 191, 192, 193, 194
    acc = lambda nt, rt: (nt * 9 + rt) * 4
    e.valu('v_and_b32', V(vL), '63', 'v0')
    e.valu('v_lshlrev_b32', V(vOo), '4', V(vL))
    e.salu('s_mov_b32', S(st), '6554')
    for i in range(5):
        e.valu('v_add_u32', V(t0), str(64 * i), V(vL))
        e.valu('v_mul_u32_u24', V(t1), S(st), V(t0))
        e.valu('v_lshrrev_b32', V(t1), '16', V(t1))
        e.valu('v_mul_u32_u24', V(t2), '10', V(t1))
        e.valu('v_sub_u32', V(t0), V(t0), V(t2))
        e.valu('v_lshlrev_b32', V(t0), '4', V(t0))
        e.valu('v_mul_u32_u24', V(t1), '1280', V(t1))
        e.valu('v_add_u32', V(vWo[i]), V(t0), V(t1))
    e.salu('s_mul_i32', S(sLb), S(sWv), '40960')
    e.valu('v_lshrrev_b32', V(t0), '2', V(vL))
    e.valu('v_mul_u32_u24', V(t0), '160', V(t0))
    e.valu('v_and_b32', V(t1), '3', V(vL))
    e.valu('v_lshl_add_u32', V(t0), V(t1), '3', V(t0))
    e.valu('v_add_u32', V(aT), S(sLb), V(t0))
    e.salu('s_lshl_b32', S(st), S(sBlk), '4')
    e.salu('s_add_u32', S(st), S(st), S(sB))
    e.salu('s_mul_i32', S(st), S(st), '192')
    e.salu('s_mul_i32', 's36', S(sWv), '48')
    e.salu('s_add_u32', S(st), S(st), 's36')
    e.salu('s_mul_i32', S(sO0), S(st), '9216')
    e.salu('s_add_u32', S(sO1), S(sO0), '4096')
    e.salu('s_add_u32', S(sO2), S(sO0), '8192')
    e.salu('s_mul_i32', S(sWoff), 's36', '40960')
    e.salu('s_mul_i32', S(st), S(sNs), '160')
    e.salu('s_add_u32', S(sWoff), S(sWoff), S(st))
    e.salu('s_mul_i32', S(sOo), S(sB), '368640')
    e.salu('s_mul_i32', S(st), S(sBlk), '1280')
    e.salu('s_add_u32', S(sOo), S(sOo), S(st))
    e.salu('s_mul_i32', S(st), S(sNs), '160')
    e.salu('s_add_u32', S(sOo), S(sOo), S(st))
    e.salu('s_mov_b32', S(sCnt), '0')

    def issue(u):
        for i in range(5):
            e.salu('s_add_u32', 'm0', S(sLb), str((u % 8) * 5120 + i * 1024))
            e.dma(V(vWo[i]), S(sWo, 4), S(sWoff), tag=('w', u % 8))
        for rt in range(9):
            e.bload('buffer_load_dwordx4', V(OF(u % 4, rt), 4), V(vOo), S(sOw, 4), S([sO0, sO1, sO2][rt >> 2]), off=(rt & 3) * 1024, tag=('o', u % 8))
        e.salu('s_add_u32', S(sO0), S(sO0), '9216')
        e.salu('s_add_u32', S(sO1), S(sO1), '9216')
        e.salu('s_add_u32', S(sO2), S(sO2), '9216')
        e.salu('s_add_u32', S(sWoff), S(sWoff), '40960')

    def ldw(u):
        e.need([('w', u % 8)])
        for nt in range(5):
            e.ds_read('ds_read_b64_tr_b16', V(WF(u & 1, nt), 2), V(aT), off=(u % 8) * 5120 + nt * 32)
            e.ds_read('ds_read_b64_tr_b16', V(WF(u & 1, nt) + 2, 2), V(aT), off=(u % 8) * 5120 + 2560 + nt * 32)

    for a in range(180):
        e.valu('v_accvgpr_write_b32', A(a), '0')
    for u in range(3):
        issue(u)
    ldw(0)

    def body():
        for u in range(8):
            issue(u + 3)
            n = 0
            for rt in range(9):
                for nt in range(5):
                    e.mfma(A(acc(nt, rt), 4), V(WF(u & 1, nt), 4), V(OF(u % 4, rt), 4), A(acc(nt, rt), 4))
                    n += 1
                    if n == 22:
                        ldw(u + 1)
    save = (e.lines, e.hist, e.pos, e.lds, e.vm)
    vm_in, lds_in = list(e.vm), list(e.lds)
    e.lines = []
    body()
    vm_out = list(e.vm)
    e.lines, e.hist, e.pos, e.lds, e.vm = save
    assert [t for t, _ in vm_out] == [t for t, _ in vm_in], (vm_out, vm_in)
    e.flush_hazards()
    e.label('L_k2_loop')
    body()
    e.salu('s_add_u32', S(sCnt), S(sCnt), '1')
    e.salu('s_cmp_lt_u32', None, S(sCnt), '6')
    e.raw('    s_cbranch_scc1 L_k2_loop')
    e.flush_hazards()
    e.wait_vm0()
    e.barrier()
    tiles = [(nt, rt) for nt in range(5) for rt in range(9)]
    rounds = [tiles[:24], tiles[24:]]
    aR, aRw, vS = 195, 196, 197
    e.valu('v_lshlrev_b32', V(aR), '4', V(vL))
    e.salu('s_mul_i32', S(st), S(sWv), '24576')
    e.valu('v_add_u32', V(aRw), S(st), V(aR))
    e.valu('v_add_u32', V(t2), '49152', V(aR))
    e.valu('v_and_b32', V(t0), '15', V(vL))
    e.valu('v_mul_u32_u24', V(t0), '2560', V(t0))
    e.valu('v_lshrrev_b32', V(t1), '4', V(vL))
    e.valu('v_lshl_add_u32', V(vS), V(t1), '3', V(t0))
    for ri, rd in enumerate(rounds):
        for ti, (nt, rt) in enumerate(rd):
            e.ds_write('ds_write_b128', V(aRw), A(acc(nt, rt), 4), off=ti * 1024)
        e.barrier()
        for w in range(4):
            lab = 'L_k2_r%d_w%d' % (ri, w)
            e.salu('s_cmp_lg_u32', None, S(sWv), str(w))
            e.raw('    s_cbranch_scc1 %s' % lab)
            mine = [(ti, t) for ti, t in enumerate(rd) if ti % 4 == w]
            for n, (ti, (nt, rt)) in enumerate(mine):
                b = n * 16
                for p in range(4):
                    ad, of = (aR, p * 24576 + ti * 1024) if p < 2 else (t2, (p - 2) * 24576 + ti * 1024)
                    e.ds_read('ds_read_b128', V(b + p * 4, 4), V(ad), off=of)
            for n, (ti, (nt, rt)) in enumerate(mine):
                b = n * 16
                for i in range(4):
                    e.valu('v_add_f32', V(b + i), V(b + i), V(b + 4 + i))
                    e.valu('v_add_f32', V(b + 8 + i), V(b + 8 + i), V(b + 12 + i))
                for i in range(4):
                    e.valu('v_add_f32', V(b + i), V(b + i), V(b + 8 + i))
                e.valu('v_cvt_pk_bf16_f32', V(b), V(b), V(b + 1))
                e.valu('v_cvt_pk_bf16_f32', V(b + 1), V(b + 2), V(b + 3))
                e.salu('s_add_u32', S(st), S(sOo), str(rt * 40960 + nt * 32))
                e.bstore('buffer_store_dwordx2', V(b, 2), V(vS), S(sOut, 4), S(st), tag='out')
            e.wait_lds()
            e.label(lab)
            e.flush_hazards()
        if ri == 0:
            e.barrier()
    e.label('L_k2_exit')
    e.raw('    s_endpgm')
    return e.text()


HEADER = open('cdna_kernels/%s.s.ref' % NAME).read().split('; Override launch')[0]


def kd(name, vgpr, acc, sgpr=102):
    return '''.amdhsa_kernel %s
  .amdhsa_next_free_vgpr %d
  .amdhsa_next_free_sgpr %d
  .amdhsa_accum_offset %d
  .amdhsa_group_segment_fixed_size 0
  .amdhsa_kernarg_size 104
  .amdhsa_user_sgpr_count 2
  .amdhsa_user_sgpr_kernarg_segment_ptr 1
  .amdhsa_system_sgpr_workgroup_id_x 1
.end_amdhsa_kernel
''' % (name, vgpr, sgpr, acc)


def main():
    out = HEADER
    out += '; @launch kernel=attn_kernel grid=(256,1,1) block=(512,1,1) lds=163840\n'
    out += '; @launch kernel=oproj_kernel grid=(256,1,1) block=(256,1,1) lds=163840\n'
    out += '.amdgcn_target "amdgcn-amd-amdhsa--gfx950"\n.text\n'
    out += '.globl attn_kernel\n.type attn_kernel,@function\n.globl oproj_kernel\n.type oproj_kernel,@function\n'
    out += gen_k1()
    out += gen_k2()
    out += '.section .rodata,"a"\n.p2align 6\n'
    out += kd('attn_kernel', 256, 256)
    out += '.p2align 6\n'
    out += kd('oproj_kernel', 512, 256)
    dst = sys.argv[1] if len(sys.argv) > 1 else 'cdna_kernels/%s.s' % NAME
    open(dst, 'w').write(out)
    print('wrote', dst, len(out), 'bytes')


if __name__ == '__main__':
    main()
```

```python
import math, sys, os
NOMFMA = os.environ.get('NOMFMA')
K0SEG = int(os.environ.get('K0SEG', '1'))
K1SEG = int(os.environ.get('K1SEG', '8'))
USE_NT = not os.environ.get('NONT')
USE_PF = not os.environ.get('NOPF')
NOSM = os.environ.get('NOSM')
from em import Em, V, A, S, f32hex

NAME = 'concat_heads__gqa_block_cached__mha_block_cached__near_ridge'

TILE = 24576
VW = 0
KR = 73728
PX = 122880
PXB = 18432
SML = 159744
SMM = SML + 2304
LDS1 = 163840
XBUF = [PX, PX + PXB, KR + TILE]
XBASE = KR + TILE

SCALE_C = (192 ** -0.5) * math.log2(math.e)


def weave(e, main, fills):
    nm = sum(1 for k, _ in main if k == 'm')
    after = {}
    for lo, hi, fl in fills:
        if not fl:
            continue
        hi = min(hi, nm - 1)
        lo = min(lo, hi)
        if nm == 0:
            after.setdefault(-1, []).extend(fl)
            continue
        span = hi - lo + 1
        for i, f in enumerate(fl):
            after.setdefault(lo + (i * span) // len(fl), []).append(f)
    for f in after.get(-1, []):
        f()
    i = 0
    for k, fn in main:
        fn()
        if k == 'm':
            for f in after.get(i, []):
                f()
            i += 1


def dpos(g, n, nm):
    if g == 0:
        return (0, n)
    lo = max(0, nm - 3 - n)
    return (lo, lo + n)


class K1:
    sK, sVv, sW, sX, sO = 8, 12, 16, 20, 24
    sWv, sS, sW3, sW2 = 28, 29, 30, 31
    sBH, sHW, sXB, sOB, sCnt, sC = 32, 33, 34, 35, 36, 37
    sT = [38, 39, 40]
    sBHn, sHWn = 41, 42
    sPo, sSo = 43, 44
    st0, st1, st2 = 45, 46, 47

    def __init__(self, e, grp, dbg=None):
        self.e = e
        self.g = grp
        self.dbg = dbg
        if grp == 0:
            self.qts = [0, 1, 2, 3, 4]
            self.pts = [0, 1, 2, 3]
            self.rt0 = 0
        else:
            self.qts = [5, 6, 7, 8]
            self.pts = [4, 5, 6, 7, 8]
            self.rt0 = 4
        nq, np_ = len(self.qts), len(self.pts)
        self.nq, self.np = nq, np_
        self.QF = 0
        self.OA = nq * 24
        self.SS = self.OA + np_ * 12
        assert self.SS + nq * 4 <= 188
        r = 188
        self.KF = [r, r + 4]; r += 8
        self.VF = [r, r + 4, r + 8]; r += 12
        self.PF = [r, r + 4, r + 8]; r += 12
        self.mq = [r, r + 4]; r += 8
        self.m1 = [r, r + 1]; r += 2
        self.l = r; r += 5
        self.al = r; r += 5
        self.vLane = r; r += 1
        self.vKV = r; r += 1
        self.vW = r; r += 1
        self.vX = r; r += 1
        self.aK = [r, r + 1]; r += 2
        self.aV = [r, r + 1, r + 2]; r += 3
        self.aP = r; r += 1
        self.aPw = r; r += 1
        self.aM = r; r += 1
        self.t0 = r; r += 1
        self.t1 = r; r += 1
        self.t2 = r; r += 1
        self.t3 = r; r += 1
        assert r <= 256, r
        self.aX = self.aK
        self.aW = self.aV
        self.vslot = None

    def qf(self, iq, ks):
        return self.QF + iq * 24 + ks * 4

    def acc(self, iq, dt):
        return self.qf(iq, 3 + dt)

    def oa(self, ip, dt):
        return self.OA + ip * 12 + dt * 4

    def ss(self, iq):
        return self.SS + iq * 4

    def mreg(self, st, idx):
        return self.m1[st] if idx == 0 else self.mq[st] + idx - 1

    def dma_tile(self, kind, idx, nxt=False):
        e = self.e
        fns = []
        tag = (kind, idx, nxt)
        if kind == 'W':
            slot = VW + (idx % 3) * TILE
            base, add, srd, voff = (self.sHWn if nxt else self.sHW), idx * 786432, self.sW, self.vW
        elif kind == 'V':
            slot = VW + ((10 + idx) % 3) * TILE
            base, add, srd, voff = (self.sBHn if nxt else self.sBH), idx * TILE, self.sVv, self.vKV
        else:
            slot = KR + (idx & 1) * TILE
            base, add, srd, voff = (self.sBHn if nxt else self.sBH), idx * TILE, self.sK, self.vKV
        for i in range(3):
            def f(i=i):
                if i == 0:
                    e.salu('s_add_u32', S(self.st0), S(base), str(add))
                e.salu('s_add_u32', 'm0', S(self.sW3), str(slot + i * 1024 - i * 128))
                e.dma(V(voff), S(srd, 4), S(self.st0), off=i * 128, tag=tag, nt=(kind != 'W' and USE_NT))
            fns.append(f)
        return fns

    def xbuf(self, c):
        return XBUF[c % 3] if c <= 5 else XBUF[c & 1]

    def dma_x(self, c):
        e = self.e
        fns = []
        tag = ('x', c, False)
        for n in range(3):
            def f(n=n):
                e.salu('s_add_u32', S(self.st1), S(self.sXB), str(c * 128 + 9216 * n))
                if n == 0:
                    e.salu('s_add_u32', 'm0', S(self.sW2), str(self.xbuf(c)))
                if n == 2:
                    e.salu('s_mov_b64', 'exec', '0xffff')
                e.dma(V(self.vX), S(self.sX, 4), S(self.st1), off=n * 1024, tag=tag)
                if n == 2:
                    e.salu('s_mov_b64', 'exec', '-1')
            fns.append(f)
        return fns

    def dma_x_joined(self, c):
        fl = self.dma_x(c)

        def f():
            for x in fl:
                x()
        return [f]

    def l2_prefetch(self):
        e = self.e

        def fw():
            e.valu('v_min_u32', V(self.t2), '29', V(self.vLane))
            e.valu('v_mul_u32_u24', V(self.t3), '43', V(self.t2))
            e.valu('v_lshrrev_b32', V(self.t3), '7', V(self.t3))
            e.valu('v_mul_u32_u24', V(self.t1), '3', V(self.t3))
            e.valu('v_sub_u32', V(self.t2), V(self.t2), V(self.t1))
            e.valu('v_lshlrev_b32', V(self.t2), '7', V(self.t2))
            e.valu('v_mul_u32_u24', V(self.t3), '12288', V(self.t3))
            e.valu('v_add_u32', V(self.t2), V(self.t2), V(self.t3))
            e.salu('s_add_u32', S(self.st2), 's74', S(self.sHWn))
            e.bload('buffer_load_dword', V(self.t3), V(self.t2), S(self.sW, 4), S(self.st2), tag='pf')

        def fx():
            e.valu('v_min_u32', V(self.t2), '44', V(self.vLane))
            e.valu('v_lshlrev_b32', V(self.t2), '7', V(self.t2))
            e.bload('buffer_load_dword', V(self.t3), V(self.t2), S(self.sX, 4), 's75', tag='pf')
        return [fw, fx]

    def lane_fields(self, q, g, r=None, c=None):
        e = self.e
        e.valu('v_and_b32', V(q), '15', V(self.vLane))
        e.valu('v_lshrrev_b32', V(g), '4', V(self.vLane))
        if r is not None:
            e.valu('v_bfe_u32', V(r), V(self.vLane), '2', '2')
            e.valu('v_and_b32', V(c), '3', V(self.vLane))

    def setup_tr_addr(self, dst, kindW):
        e = self.e
        q, g, r, c, sw, t, u, base = [self.KF[0] + i for i in range(8)]
        self.lane_fields(q, g, r, c)
        if kindW:
            e.valu('v_lshrrev_b32', V(sw), '1', V(r))
            e.valu('v_and_b32', V(t), '1', V(g))
            e.valu('v_lshl_add_u32', V(sw), V(t), '1', V(sw))
            e.valu('v_lshlrev_b32', V(sw), '1', V(sw))
            e.valu('v_mul_u32_u24', V(base), '3072', V(g))
            e.valu('v_lshl_add_u32', V(base), V(r), '7', V(base))
        else:
            e.valu('v_lshrrev_b32', V(sw), '1', V(r))
            e.valu('v_lshl_add_u32', V(sw), V(g), '1', V(sw))
            e.valu('v_and_b32', V(sw), '3', V(sw))
            e.valu('v_lshlrev_b32', V(sw), '1', V(sw))
            e.valu('v_lshrrev_b32', V(t), '1', V(g))
            e.valu('v_mul_u32_u24', V(base), '3072', V(t))
            e.valu('v_and_b32', V(t), '1', V(g))
            e.valu('v_lshl_add_u32', V(t), V(t), '2', V(r))
            e.valu('v_lshl_add_u32', V(base), V(t), '7', V(base))
        e.valu('v_and_b32', V(t), '1', V(c))
        e.valu('v_lshl_add_u32', V(base), V(t), '3', V(base))
        e.valu('v_lshrrev_b32', V(c), '1', V(c))
        for dt in range(3):
            e.salu('s_lshl_b32', S(self.st0), S(self.sT[dt]), '1')
            e.valu('v_add_u32', V(t), S(self.st0), V(c))
            e.valu('v_lshrrev_b32', V(u), '3', V(t))
            e.valu('v_and_b32', V(t), '7', V(t))
            e.valu('v_xor_b32', V(t), V(t), V(sw))
            e.valu('v_lshl_add_u32', V(t), V(t), '4', V(base))
            e.valu('v_lshl_add_u32', V(dst[dt]), V(u), '10', V(t))

    def setup_qproj_addr(self):
        e = self.e
        self.setup_tr_addr(self.aW, True)
        q, g, sw, t = [self.KF[0] + i for i in range(4)]
        self.lane_fields(q, g)
        e.valu('v_and_b32', V(sw), '6', V(q))
        e.valu('v_xor_b32', V(t), V(g), V(sw))
        e.valu('v_lshlrev_b32', V(t), '4', V(t))
        e.valu('v_lshl_add_u32', V(t), V(q), '7', V(t))
        e.valu('v_add_u32', V(self.aX[0]), str(XBASE), V(t))
        e.valu('v_xor_b32', V(self.aX[1]), '64', V(self.aX[0]))

    def setup_attn_addr(self):
        e = self.e
        self.setup_tr_addr(self.aV, False)
        self.vslot = 0
        q, g, sw, t, u = [self.KF[0] + i for i in range(5)]
        self.lane_fields(q, g)
        e.valu('v_and_b32', V(sw), '6', V(q))
        e.valu('v_xor_b32', V(t), V(g), V(sw))
        e.valu('v_lshlrev_b32', V(t), '4', V(t))
        e.valu('v_and_b32', V(u), '7', V(q))
        e.valu('v_lshl_add_u32', V(t), V(u), '7', V(t))
        e.valu('v_lshrrev_b32', V(u), '3', V(q))
        e.valu('v_mul_u32_u24', V(u), '3072', V(u))
        e.salu('s_mul_i32', S(self.st0), S(self.sS), '6144')
        e.salu('s_add_u32', S(self.st0), S(self.st0), str(KR))
        e.valu('v_add3_u32', V(self.aK[0]), V(t), V(u), S(self.st0))
        e.valu('v_xor_b32', V(self.aK[1]), '64', V(self.aK[0]))

    def set_vslot(self, slot):
        e = self.e
        d = slot - self.vslot
        if d:
            for dt in range(3):
                if d > 0:
                    e.valu('v_add_u32', V(self.aV[dt]), str(d), V(self.aV[dt]))
                else:
                    e.valu('v_subrev_u32', V(self.aV[dt]), str(-d), V(self.aV[dt]))
            self.vslot = slot

    def seg_q(self, c):
        e = self.e
        nq = self.nq
        e.comment('---- Q seg %d' % c)
        if c == 0:
            self.setup_qproj_addr()
            t = self.KF[0]
            e.valu('v_mov_b32', V(t), '0xff800000')
            e.valu('v_mov_b32', V(t + 1), '0xff800000')
            e.valu('v_lshlrev_b32', V(t + 2), '3', V(self.vLane))
            e.valu('v_add_u32', V(t + 2), str(SMM), V(t + 2))
            for k in range(3):
                e.ds_write('ds_write_b64', V(t + 2), V(t, 2), off=512 * k)
        slot = VW + (c % 3) * TILE
        xo = self.xbuf(c) - XBASE
        WF = [self.OA, self.OA + 12]
        XF = [self.OA + 24, self.OA + 28, self.OA + 32]
        dm = []
        if c + 2 <= 9:
            dm += self.dma_tile('W', c + 2)
        xs = {0: 1, 1: 3, 2: 4, 3: 5, 4: 6, 5: 7, 7: 8, 8: 9}
        if c in xs:
            dm += self.dma_x_joined(xs[c])
        if c == K0SEG:
            dm += self.dma_tile('K', 0)
        if c == K1SEG:
            dm += self.dma_tile('K', 1)
        if c + 2 > 9:
            dm += self.dma_tile('V', c - 8)
        main = []

        def ldw(ks, dt):
            def f():
                e.ds_read('ds_read_b64_tr_b16', V(WF[ks] + dt * 4, 2), V(self.aW[dt]), off=slot + ks * 12288)
                e.ds_read('ds_read_b64_tr_b16', V(WF[ks] + dt * 4 + 2, 2), V(self.aW[dt]), off=slot + ks * 12288 + 512)
            return f

        def ldx(idx):
            ks, iq = divmod(idx, nq)

            def f():
                e.ds_read('ds_read_b128', V(XF[idx % 3], 4), V(self.aX[ks]), off=xo + self.qts[iq] * 2048)
            return f
        for dt in range(3):
            main.append(('o', ldw(0, dt)))
        for idx in range(3):
            main.append(('o', ldx(idx)))
        for dt in range(3):
            main.append(('o', ldw(1, dt)))
        for idx in range(2 * nq):
            ks, iq = divmod(idx, nq)
            for dt in range(3):
                def f(ks=ks, iq=iq, dt=dt, idx=idx):
                    a = self.acc(iq, dt)
                    e.mfma(V(a, 4), V(WF[ks] + dt * 4, 4), V(XF[idx % 3], 4), '0' if (c == 0 and ks == 0) else V(a, 4))
                main.append(('m', f))
            if idx + 3 < 2 * nq:
                main.append(('o', ldx(idx + 3)))
        weave(e, main, [dpos(self.g, len(dm), 6 * nq) + (dm,)])
        if c < 9:
            e.need([('W', c + 1, False), ('x', c + 1, False)])
            e.barrier()
            self.stamp()

    def exchange(self):
        e = self.e
        nq = self.nq
        for iq in range(nq):
            for dt in range(3):
                a = self.acc(iq, dt)
                e.valu('v_cvt_pk_bf16_f32', V(a), V(a), V(a + 1))
                e.valu('v_cvt_pk_bf16_f32', V(a + 1), V(a + 2), V(a + 3))
        q, g, base = self.KF[0], self.KF[0] + 1, self.KF[0] + 2
        aQw = [self.KF[0] + 3, self.KF[0] + 4, self.KF[0] + 5]
        aQr = self.KF[0] + 6
        self.lane_fields(q, g)
        e.valu('v_mul_u32_u24', V(base), '208', V(q))
        e.valu('v_add_u32', V(base), str(PX), V(base))
        e.valu('v_lshl_add_u32', V(aQr), V(g), '4', V(base))
        e.valu('v_lshl_add_u32', V(base), V(g), '3', V(base))
        for dt in range(3):
            e.salu('s_sub_u32', S(self.st0), S(self.sT[dt]), '6')
            e.salu('s_cmp_ge_u32', None, S(self.sT[dt]), '6')
            e.salu('s_cselect_b32', S(self.st0), S(self.st0), S(self.sT[dt]))
            e.salu('s_lshl_b32', S(self.st0), S(self.st0), '5')
            e.valu('v_add_u32', V(aQw[dt]), S(self.st0), V(base))

        def wr_block(lab, ge):
            e.salu('s_cmp_ge_u32', None, S(self.sS), '2')
            e.raw('    s_cbranch_scc%d %s' % (0 if ge else 1, lab))
            for iq in range(nq):
                for dt in range(3):
                    e.ds_write('ds_write_b64', V(aQw[dt]), V(self.acc(iq, dt), 2), off=self.qts[iq] * 3328)
            e.wait_lds()
            e.label(lab)
            e.flush_hazards()
        wr_block('L_exA_%d' % self.g, False)
        e.barrier()
        self.stamp()
        for f in self.dma_tile('V', 2):
            f()
        for iq in range(nq):
            for ks in range(3):
                e.ds_read('ds_read_b128', V(self.qf(iq, ks), 4), V(aQr), off=self.qts[iq] * 3328 + ks * 64)
        e.barrier()
        self.stamp()
        wr_block('L_exB_%d' % self.g, True)
        e.need([('K', 0, False)])
        e.barrier()
        self.stamp()
        for iq in range(nq):
            for ks in range(3):
                e.ds_read('ds_read_b128', V(self.qf(iq, 3 + ks), 4), V(aQr), off=self.qts[iq] * 3328 + ks * 64)
        e.wait_lds()
        self.setup_attn_addr()
        for idx in range(5):
            e.valu('v_mov_b32', V(self.mreg(1, idx)), '0xff800000')
            e.valu('v_mov_b32', V(self.l + idx), '0')

    def seg_a(self, j):
        e = self.e
        nq, np_ = self.nq, self.np
        doB = 0 <= j <= 7
        doC = 1 <= j <= 8
        doA = -1 <= j <= 6
        e.comment('---- attn seg %d' % j)
        dm = []
        dm2 = []
        if 0 <= j <= 5:
            dm += self.dma_tile('K', j + 2)
        if 1 <= j <= 5:
            dm2 += self.dma_tile('V', j + 2)
        if j == 6:
            dm2 += self.dma_tile('W', 0, True)
        if j == 7:
            dm2 += self.dma_tile('W', 1, True)
        if j == 8:
            dm += self.dma_x_joined(0)
            dm += self.dma_x_joined(2)
        if USE_PF and j == 4:
            dm2 += self.l2_prefetch()
        mid = 1 <= j <= 7
        new, old = (j & 1), ((j + 1) & 1)
        fB = []
        if doB:
            mo = SMM + (j & 1) * 768
            e.ds_read('ds_read_b32', V(self.m1[new]), V(self.aM), off=mo - SMM + (3 + self.rt0) * 4)
            e.ds_read('ds_read_b128', V(self.mq[new], 4), V(self.aM), off=mo - SMM + (4 + self.rt0) * 4)
            for idx in range(5):
                mn, mo_, al = self.mreg(new, idx), self.mreg(old, idx), self.al + idx
                fB.append(lambda mn=mn: e.valu('v_mul_f32', V(mn), S(self.sC), V(mn)))
            for idx in range(5):
                mn, mo_, al = self.mreg(new, idx), self.mreg(old, idx), self.al + idx
                fB.append(lambda mn=mn, mo_=mo_: e.valu('v_max_f32', V(mn), V(mn), V(mo_)))
            for idx in range(5):
                mn, mo_, al = self.mreg(new, idx), self.mreg(old, idx), self.al + idx
                fB.append(lambda mn=mn, mo_=mo_, al=al: e.valu('v_sub_f32', V(al), V(mo_), V(mn)))
            for idx in range(5):
                al = self.al + idx
                fB.append(lambda al=al: e.valu('v_exp_f32', V(al), V(al)))
            for iq in range(nq):
                idx = self.qts[iq] - self.rt0
                s0 = self.ss(iq)
                for i in range(4):
                    fB.append(lambda s0=s0, i=i, idx=idx: e.valu('v_fma_f32', V(s0 + i), V(s0 + i), S(self.sC), '-' + V(self.mreg(new, idx))))
            for iq in range(nq):
                idx = self.qts[iq] - self.rt0
                s0 = self.ss(iq)
                lr = self.l + idx
                for i in range(4):
                    fB.append(lambda s0=s0, i=i: e.valu('v_exp_f32', V(s0 + i), V(s0 + i)))
            for iq in range(nq):
                idx = self.qts[iq] - self.rt0
                s0 = self.ss(iq)
                lr = self.l + idx
                fB.append(lambda s0=s0, lr=lr, idx=idx: e.valu('v_fma_f32', V(lr), V(lr), V(self.al + idx), V(s0)))
                fB.append(lambda s0=s0: e.valu('v_add_f32', V(self.t0), V(s0 + 1), V(s0 + 2)))
                fB.append(lambda s0=s0, lr=lr: e.valu('v_add_f32', V(lr), V(lr), V(s0 + 3)))
                fB.append(lambda s0=s0: e.valu('v_cvt_pk_bf16_f32', V(s0), V(s0), V(s0 + 1)))
                fB.append(lambda lr=lr: e.valu('v_add_f32', V(lr), V(lr), V(self.t0)))
                fB.append(lambda s0=s0: e.valu('v_cvt_pk_bf16_f32', V(s0 + 1), V(s0 + 2), V(s0 + 3)))
                fB.append(lambda s0=s0, iq=iq: e.ds_write('ds_write_b64', V(self.aPw), V(s0, 2), off=(j & 1) * PXB + self.qts[iq] * 2048))
        if NOSM:
            fB = []
        mainC = []
        kslot = ((j + 1) & 1) * TILE
        KB = [self.KF[0], self.KF[1], self.PF[0], self.PF[1], self.PF[2], self.KF[0]]

        def ldk(ks):
            def f():
                e.ds_read('ds_read_b128', V(KB[ks], 4), V(self.aK[ks & 1]), off=kslot + (ks >> 1) * 1024)
            return f
        if doC:
            self.set_vslot(VW + ((10 + j - 1) % 3) * TILE)
            pbuf = ((j - 1) & 1) * PXB

            def ldv(k, dt):
                def f():
                    e.ds_read('ds_read_b64_tr_b16', V(self.VF[dt], 2), V(self.aV[dt]), off=(4 * k) * 3072)
                    e.ds_read('ds_read_b64_tr_b16', V(self.VF[dt] + 2, 2), V(self.aV[dt]), off=(4 * k + 2) * 3072)
                return f

            def ldp(idx):
                k, ip = divmod(idx, np_)

                def f():
                    e.ds_read('ds_read_b128', V(self.PF[idx % 3], 4), V(self.aP), off=pbuf + (self.pts[ip] * 2 + k) * 1024)
                return f
            for dt in range(3):
                mainC.append(('o', ldv(0, dt)))
            for idx in range(3):
                mainC.append(('o', ldp(idx)))
            for idx in range(2 * np_):
                k, ip = divmod(idx, np_)
                for dt in range(3):
                    def f(k=k, ip=ip, dt=dt, idx=idx):
                        o = self.oa(ip, dt)
                        e.mfma(V(o, 4), V(self.VF[dt], 4), V(self.PF[idx % 3], 4), '0' if (j == 1 and k == 0) else V(o, 4))
                    mainC.append(('m', f))
                    if k == 0 and ip == np_ - 1:
                        mainC.append(('o', ldv(1, dt)))
                if idx + 3 < 2 * np_:
                    mainC.append(('o', ldp(idx + 3)))
            weave(e, mainC, [(0, 6 * np_ - 2, fB), dpos(self.g, len(dm), 6 * np_) + (dm,)])
            dm = []
        else:
            if doA:
                ldk(0)()
                ldk(1)()
            for f in fB:
                f()
        if j == 7:
            self.l_exchange()
        if mid:
            if doA:
                e.need([('K', j + 1, False)])
            e.barrier()
            self.stamp()
            if doA:
                ldk(0)()
                ldk(1)()
        dm += dm2
        fR = []
        if doB and j >= 1:
            for ip in range(np_):
                idx = self.pts[ip] - self.rt0
                for dt in range(3):
                    for i in range(4):
                        o = self.oa(ip, dt) + i
                        fR.append(lambda o=o, idx=idx: e.valu('v_mul_f32', V(o), V(self.al + idx), V(o)))
        if NOSM:
            fR = []
        if doA:
            mainA = []
            for ks in range(2, 5):
                mainA.append(('o', ldk(ks)))
            for ks in range(6):
                for iq in range(nq):
                    def f(ks=ks, iq=iq):
                        s0 = self.ss(iq)
                        e.mfma(V(s0, 4), V(KB[ks], 4), V(self.qf(iq, ks), 4), '0' if ks == 0 else V(s0, 4))
                    mainA.append(('m', f))
                if ks == 0:
                    mainA.append(('o', ldk(5)))
            weave(e, mainA, [(1, 6 * nq - 1, fR), dpos(self.g, len(dm), 6 * nq) + (dm,)])
            dm = []
            mo = ((j + 1) & 1) * 768
            for iq in range(nq):
                s0 = self.ss(iq)
                t = self.t0 if iq & 1 else self.t1
                e.valu('v_max3_f32', V(t), V(s0), V(s0 + 1), V(s0 + 2))
                e.valu('v_max_f32', V(t), V(t), V(s0 + 3))
                e.ds_write('ds_max_f32', V(self.aM), V(t), off=mo + (3 + self.qts[iq]) * 4)
        else:
            for f in fR:
                f()
            for f in dm:
                f()
        if j == 8:
            self.epilogue()
        nd = []
        if j + 1 <= 0:
            nd.append(('K', j + 2, False))
        if 1 <= j + 1 <= 8:
            nd.append(('V', j, False))
        if j == 8:
            nd = [('W', 0, True), ('x', 0, False)]
        e.need(nd)
        e.barrier()
        self.stamp()

    def l_exchange(self):
        e = self.e
        idxs = [qt - self.rt0 for qt in self.qts]
        q, g, ad = self.QF, self.QF + 1, self.QF + 2
        self.lane_fields(q, g)
        pack = idxs[-4:]
        a, b, c, d = [self.l + i for i in pack]
        e.perm('v_permlane16_swap_b32', V(a), V(b))
        e.perm('v_permlane16_swap_b32', V(c), V(d))
        e.valu('v_add_f32', V(a), V(a), V(b))
        e.valu('v_add_f32', V(c), V(c), V(d))
        e.perm('v_permlane32_swap_b32', V(a), V(c))
        e.valu('v_add_f32', V(a), V(a), V(c))
        rtp = pack[0] + self.rt0
        e.salu('s_lshl_b32', S(self.st0), S(self.sS), '2')
        e.salu('s_add_u32', S(self.st0), S(self.st0), str(SML))
        e.valu('v_lshlrev_b32', V(ad), '4', V(q))
        e.valu('v_add_u32', V(ad), S(self.st0), V(ad))
        e.valu('v_lshl_add_u32', V(ad + 1), V(g), '8', V(ad))
        e.ds_write('ds_write_b32', V(ad + 1), V(a), off=rtp * 256)
        if len(idxs) == 5:
            x = self.l + idxs[0]
            y = self.QF + 5
            e.valu('v_mov_b32', V(y), V(x))
            e.perm('v_permlane16_swap_b32', V(x), V(y))
            e.valu('v_add_f32', V(x), V(x), V(y))
            e.valu('v_mov_b32', V(y), V(x))
            e.perm('v_permlane32_swap_b32', V(x), V(y))
            e.valu('v_add_f32', V(x), V(x), V(y))
            e.ds_write('ds_write_b32', V(ad), V(x), off=(idxs[0] + self.rt0) * 256)

    def epilogue(self):
        e = self.e
        np_ = self.np
        q, ad, vo = self.QF, self.QF + 1, self.QF + 2
        e.valu('v_and_b32', V(q), '15', V(self.vLane))
        e.valu('v_lshlrev_b32', V(ad), '4', V(q))
        e.valu('v_add_u32', V(ad), str(SML), V(ad))
        e.valu('v_lshlrev_b32', V(vo), '4', V(self.vLane))
        L = self.QF + 4
        for ip in range(np_):
            e.ds_read('ds_read_b128', V(L + ip * 4, 4), V(ad), off=self.pts[ip] * 256)
        for ip in range(np_):
            x = L + ip * 4
            e.valu('v_add_f32', V(x), V(x), V(x + 1))
            e.valu('v_add_f32', V(x + 2), V(x + 2), V(x + 3))
            e.valu('v_add_f32', V(x), V(x), V(x + 2))
            e.valu('v_rcp_f32', V(x), V(x))
        for ip in range(np_):
            x = L + ip * 4
            o = self.oa(ip, 0)
            for i in range(12):
                e.valu('v_mul_f32', V(o + i), V(x), V(o + i))
            for i in range(6):
                e.valu('v_cvt_pk_bf16_f32', V(o + i), V(o + 2 * i), V(o + 2 * i + 1))
            rt = self.pts[ip]
            e.salu('s_add_u32', S(self.st0), S(self.sOB), S(self.sPo))
            e.salu('s_add_u32', S(self.st1), S(self.sOB), S(self.sSo))
            if rt >> 2:
                e.salu('s_add_u32', S(self.st0), S(self.st0), str((rt >> 2) * 4096))
                e.salu('s_add_u32', S(self.st1), S(self.st1), str((rt >> 2) * 4096))
            e.bstore('buffer_store_dwordx4', V(o, 4), V(vo), S(self.sO, 4), S(self.st0), off=(rt & 3) * 1024, tag='ost')
            e.bstore('buffer_store_dwordx2', V(o + 4, 2), V(vo), S(self.sO, 4), S(self.st1), off=(rt & 3) * 1024, tag='ost')

    def stamp(self):
        if not self.dbg:
            return
        e = self.e
        e.raw('    s_memtime s[70:71]')
        e.raw('    s_waitcnt lgkmcnt(0)')
        e.lds = []
        e.valu('v_mov_b32', V(self.t3), 's70')
        e.raw('    buffer_store_dword %s, off, s[%d:%d], s72' % (V(self.t3), self.sO, self.sO + 3))
        e.vm.append(('stamp', set()))
        e.pos += 3
        e.salu('s_add_u32', 's72', 's72', '4')

    def head(self):
        for c in range(10):
            self.seg_q(c)
        self.exchange()
        for j in range(-1, 9):
            self.seg_a(j)

    def retag(self):
        self.e.vm = [((t[0], t[1], False) if isinstance(t, tuple) else t, d) for t, d in self.e.vm]

    def body(self):
        e = self.e
        g = self.g
        ln, t, u = self.vLane, self.t0, self.t1
        e.valu('v_and_b32', V(ln), '63', 'v0')
        e.valu('v_lshrrev_b32', V(t), '3', V(ln))
        e.valu('v_lshrrev_b32', V(u), '4', V(ln))
        e.valu('v_lshlrev_b32', V(u), '1', V(u))
        e.valu('v_and_b32', V(self.t2), '7', V(ln))
        e.valu('v_xor_b32', V(u), V(u), V(self.t2))
        e.valu('v_lshlrev_b32', V(u), '4', V(u))
        e.valu('v_mul_u32_u24', V(self.vKV), '384', V(t))
        e.valu('v_add3_u32', V(self.vKV), V(self.vKV), V(u), S(self.sW3))
        e.salu('s_and_b32', S(self.st0), S(self.sWv), '1')
        e.salu('s_lshl_b32', S(self.st0), S(self.st0), '2')
        e.valu('v_bfe_u32', V(u), V(ln), '4', '1')
        e.valu('v_lshlrev_b32', V(u), '1', V(u))
        e.valu('v_or_b32', V(u), S(self.st0), V(u))
        e.valu('v_xor_b32', V(u), V(u), V(self.t2))
        e.valu('v_lshlrev_b32', V(u), '4', V(u))
        e.valu('v_mul_u32_u24', V(self.vW), '12288', V(t))
        e.salu('s_mul_i32', S(self.st0), S(self.sWv), '98304')
        e.valu('v_add3_u32', V(self.vW), V(self.vW), V(u), S(self.st0))
        e.salu('s_mul_i32', S(self.st0), S(self.sWv), '9')
        e.valu('v_lshrrev_b32', V(u), '4', V(ln))
        e.valu('v_add_u32', V(u), S(self.st0), V(u))
        e.valu('v_and_b32', V(u), '3', V(u))
        e.valu('v_lshlrev_b32', V(u), '1', V(u))
        e.valu('v_xor_b32', V(u), V(u), V(self.t2))
        e.valu('v_lshlrev_b32', V(u), '4', V(u))
        e.valu('v_mul_u32_u24', V(self.vX), '1280', V(t))
        e.salu('s_mul_i32', S(self.st0), S(self.sWv), '23040')
        e.valu('v_add3_u32', V(self.vX), V(self.vX), V(u), S(self.st0))
        e.valu('v_lshlrev_b32', V(t), '4', V(ln))
        e.valu('v_add_u32', V(self.aP), str(PX), V(t))
        e.salu('s_and_b32', S(self.st0), S(self.sS), '1')
        e.salu('s_lshl_b32', S(self.st0), S(self.st0), '3')
        e.salu('s_lshr_b32', S(self.st1), S(self.sS), '1')
        e.salu('s_lshl_b32', S(self.st1), S(self.st1), '10')
        e.salu('s_add_u32', S(self.st0), S(self.st0), S(self.st1))
        e.valu('v_add_u32', V(self.aPw), S(self.st0), V(self.aP))
        e.valu('v_and_b32', V(t), '15', V(ln))
        e.valu('v_mul_u32_u24', V(t), '48', V(t))
        e.valu('v_add_u32', V(self.aM), str(SMM), V(t))
        for f in self.dma_tile('W', 0) + self.dma_tile('W', 1) + self.dma_x_joined(0) + self.dma_x_joined(2):
            f()
        e.wait_vm0()
        e.barrier()
        self.stamp()
        e.wait_vm0()
        save = (e.lines, e.hist, e.pos, e.lds, e.vm, self.vslot)
        e.lines, e.hist, e.lds, e.vm = [], [], [], []
        self.head()
        self.retag()
        inq = list(e.vm)
        e.lines, e.hist, e.pos, e.lds, e.vm, self.vslot = save
        e.vm = list(inq)
        e.flush_hazards()
        e.label('L_head_%d' % g)
        self.head()
        self.retag()
        assert [t for t, _ in e.vm] == [t for t, _ in inq], (e.vm, inq)
        e.salu('s_mov_b32', S(self.sBH), S(self.sBHn))
        e.salu('s_mov_b32', S(self.sHW), S(self.sHWn))
        e.salu('s_add_u32', S(self.sBHn), S(self.sBHn), '196608')
        e.salu('s_add_u32', S(self.sHWn), S(self.sHWn), '384')
        e.salu('s_add_u32', S(self.sOB), S(self.sOB), str(6 * 9216))
        e.salu('s_add_u32', S(self.sCnt), S(self.sCnt), '1')
        e.flush_hazards()
        e.salu('s_cmp_lt_u32', None, S(self.sCnt), '4')
        e.raw('    s_cbranch_scc1 L_head_%d' % g)
        e.raw('    s_endpgm')


def srd(e, d, lo, hi, nbytes):
    e.salu('s_mov_b32', S(d), S(lo))
    e.salu('s_and_b32', S(d + 1), S(hi), '0xffff')
    e.salu('s_mov_b32', S(d + 2), str(nbytes))
    e.salu('s_mov_b32', S(d + 3), '0x00020000')


def gen_k1(dbg=False):
    e = Em()
    if NOMFMA:
        e.mfma = lambda *a: None
    k = K1
    e.raw('.p2align 8')
    e.raw('attn_kernel:')
    e.salu('s_cmp_ge_u32', None, 's2', '256')
    e.raw('    s_cbranch_scc1 L_k1_exit')
    e.raw('    s_load_dwordx8 s[48:55], s[0:1], 0')
    e.raw('    s_load_dwordx8 s[56:63], s[0:1], 40')
    e.raw('    s_load_dwordx2 s[64:65], s[0:1], 96')
    e.salu('s_and_b32', 's3', 's2', '7')
    e.salu('s_lshr_b32', 's4', 's2', '3')
    e.salu('s_lshr_b32', 's5', 's3', '2')
    e.salu('s_and_b32', 's6', 's3', '3')
    e.salu('s_lshr_b32', 's7', 's6', '1')
    e.salu('s_lshl_b32', 's7', 's7', '3')
    e.salu('s_lshr_b32', 's66', 's4', '2')
    e.salu('s_add_u32', 's7', 's7', 's66')
    e.salu('s_and_b32', 's66', 's6', '1')
    e.salu('s_lshl_b32', 's66', 's66', '2')
    e.salu('s_and_b32', 's67', 's4', '3')
    e.salu('s_add_u32', 's66', 's66', 's67')
    e.salu('s_lshl_b32', 's66', 's66', '2')
    e.raw('    s_waitcnt lgkmcnt(0)')
    e.salu('s_cmp_eq_u32', None, 's5', '0')
    for i in range(8):
        e.salu('s_cselect_b32', S(48 + i), S(48 + i), S(56 + i))
    srd(e, k.sX, 48, 49, 2949120)
    srd(e, k.sK, 50, 51, 100663296)
    srd(e, k.sVv, 52, 53, 100663296)
    srd(e, k.sW, 54, 55, 7864320)
    srd(e, k.sO, 64, 65, 440008704 if dbg else 56623104)
    e.valu('v_lshrrev_b32', 'v1', '6', 'v0')
    e.rfl(S(k.sWv), 'v1')
    e.salu('s_and_b32', S(k.sS), S(k.sWv), '3')
    e.salu('s_mul_i32', S(k.sW3), S(k.sWv), '3072')
    e.salu('s_mul_i32', S(k.sW2), S(k.sWv), '2304')
    e.salu('s_lshl_b32', 's67', 's7', '5')
    e.salu('s_add_u32', 's67', 's67', 's66')
    e.salu('s_mul_i32', S(k.sBH), 's67', '196608')
    e.salu('s_add_u32', S(k.sBHn), S(k.sBH), '196608')
    e.salu('s_mul_i32', S(k.sHW), 's66', '384')
    e.salu('s_add_u32', S(k.sHWn), S(k.sHW), '384')
    e.salu('s_mul_i32', S(k.sXB), 's7', '184320')
    e.salu('s_lshl_b32', 's67', 's5', '4')
    e.salu('s_add_u32', 's67', 's67', 's7')
    e.salu('s_mul_i32', 's67', 's67', '192')
    e.salu('s_mul_i32', 's68', 's66', '6')
    e.salu('s_add_u32', 's67', 's67', 's68')
    e.salu('s_mul_i32', S(k.sOB), 's67', '9216')
    e.salu('s_mov_b32', S(k.sCnt), '0')
    e.salu('s_mov_b32', S(k.sC), f32hex(SCALE_C))
    e.salu('s_lshr_b32', 's67', 's4', '2')
    e.salu('s_mul_i32', 's67', 's67', '80')
    e.salu('s_mul_i32', 's68', S(k.sWv), '10')
    e.salu('s_add_u32', 's67', 's67', 's68')
    e.salu('s_mul_i32', 's74', 's67', '12288')
    e.salu('s_and_b32', 's67', 's4', '3')
    e.salu('s_mul_i32', 's67', 's67', '360')
    e.salu('s_mul_i32', 's68', S(k.sWv), '45')
    e.salu('s_add_u32', 's67', 's67', 's68')
    e.salu('s_lshl_b32', 's67', 's67', '7')
    e.salu('s_add_u32', 's75', 's67', S(k.sXB))
    e.salu('s_mul_i32', 's67', S(k.sS), '3')
    e.salu('s_and_b32', 's68', S(k.sS), '1')
    e.salu('s_add_u32', S(k.sT[0]), 's67', 's68')
    e.salu('s_add_u32', S(k.sT[1]), S(k.sT[0]), '1')
    e.salu('s_add_u32', S(k.sT[2]), 's67', '2')
    e.salu('s_cmp_eq_u32', None, 's68', '1')
    e.salu('s_cselect_b32', S(k.sT[2]), 's67', S(k.sT[2]))
    e.salu('s_lshr_b32', 's67', S(k.sT[0]), '1')
    e.salu('s_mul_i32', S(k.sPo), 's67', '9216')
    e.salu('s_lshr_b32', 's67', S(k.sT[2]), '1')
    e.salu('s_mul_i32', S(k.sSo), 's67', '9216')
    e.salu('s_and_b32', 's67', S(k.sT[2]), '1')
    e.salu('s_lshl_b32', 's67', 's67', '3')
    e.salu('s_add_u32', S(k.sSo), S(k.sSo), 's67')
    if dbg:
        e.salu('s_lshl_b32', 's72', 's2', '3')
        e.salu('s_add_u32', 's72', 's72', S(k.sWv))
        e.salu('s_lshl_b32', 's72', 's72', '10')
        e.salu('s_add_u32', 's72', 's72', str(64 << 20))
    e.salu('s_cmp_ge_u32', None, S(k.sWv), '4')
    e.raw('    s_cbranch_scc1 L_grp1')
    e.flush_hazards()
    K1(e, 0, dbg).body()
    e.label('L_grp1')
    e.flush_hazards()
    e.lds, e.vm = [], []
    K1(e, 1, dbg).body()
    e.label('L_k1_exit')
    e.raw('    s_endpgm')
    return e.text()


def gen_k2():
    e = Em()
    e.raw('.p2align 8')
    e.raw('oproj_kernel:')
    e.salu('s_cmp_ge_u32', None, 's2', '256')
    e.raw('    s_cbranch_scc1 L_k2_exit')
    e.raw('    s_load_dwordx2 s[4:5], s[0:1], 32')
    e.raw('    s_load_dwordx2 s[6:7], s[0:1], 72')
    e.raw('    s_load_dwordx2 s[8:9], s[0:1], 80')
    e.raw('    s_load_dwordx2 s[10:11], s[0:1], 96')
    sWo, sOw, sOut = 12, 16, 20
    sWv, sBlk, sB, sNs, sO0, sO1, sO2, sWoff, sCnt, sLb, sOo, st = 24, 25, 26, 27, 28, 29, 30, 31, 32, 33, 34, 35
    e.salu('s_and_b32', 's3', 's2', '7')
    e.salu('s_lshr_b32', 's36', 's2', '3')
    e.salu('s_lshr_b32', S(sBlk), 's3', '2')
    e.salu('s_and_b32', 's3', 's3', '3')
    e.salu('s_lshl_b32', 's3', 's3', '2')
    e.salu('s_lshr_b32', S(sB), 's36', '3')
    e.salu('s_add_u32', S(sB), S(sB), 's3')
    e.salu('s_and_b32', S(sNs), 's36', '7')
    e.raw('    s_waitcnt lgkmcnt(0)')
    e.salu('s_cmp_eq_u32', None, S(sBlk), '0')
    e.salu('s_cselect_b32', 's4', 's4', 's6')
    e.salu('s_cselect_b32', 's5', 's5', 's7')
    srd(e, sWo, 4, 5, 7864320)
    srd(e, sOw, 10, 11, 56623104)
    srd(e, sOut, 8, 9, 5898240)
    e.valu('v_lshrrev_b32', 'v1', '6', 'v0')
    e.rfl(S(sWv), 'v1')
    OF = lambda stg, rt: stg * 36 + rt * 4
    WF = lambda buf, nt: 144 + buf * 20 + nt * 4
    vWo = [184 + i for i in range(5)]
    vOo, aT, vL, t0, t1, t2 = 189, 190, 191, 192, 193, 194
    acc = lambda nt, rt: (nt * 9 + rt) * 4
    e.valu('v_and_b32', V(vL), '63', 'v0')
    e.valu('v_lshlrev_b32', V(vOo), '4', V(vL))
    e.salu('s_mov_b32', S(st), '6554')
    for i in range(5):
        e.valu('v_add_u32', V(t0), str(64 * i), V(vL))
        e.valu('v_mul_u32_u24', V(t1), S(st), V(t0))
        e.valu('v_lshrrev_b32', V(t1), '16', V(t1))
        e.valu('v_mul_u32_u24', V(t2), '10', V(t1))
        e.valu('v_sub_u32', V(t0), V(t0), V(t2))
        e.valu('v_lshlrev_b32', V(t0), '4', V(t0))
        e.valu('v_mul_u32_u24', V(t1), '1280', V(t1))
        e.valu('v_add_u32', V(vWo[i]), V(t0), V(t1))
    e.salu('s_mul_i32', S(sLb), S(sWv), '40960')
    e.valu('v_lshrrev_b32', V(t0), '2', V(vL))
    e.valu('v_mul_u32_u24', V(t0), '160', V(t0))
    e.valu('v_and_b32', V(t1), '3', V(vL))
    e.valu('v_lshl_add_u32', V(t0), V(t1), '3', V(t0))
    e.valu('v_add_u32', V(aT), S(sLb), V(t0))
    e.salu('s_lshl_b32', S(st), S(sBlk), '4')
    e.salu('s_add_u32', S(st), S(st), S(sB))
    e.salu('s_mul_i32', S(st), S(st), '192')
    e.salu('s_mul_i32', 's36', S(sWv), '48')
    e.salu('s_add_u32', S(st), S(st), 's36')
    e.salu('s_mul_i32', S(sO0), S(st), '9216')
    e.salu('s_add_u32', S(sO1), S(sO0), '4096')
    e.salu('s_add_u32', S(sO2), S(sO0), '8192')
    e.salu('s_mul_i32', S(sWoff), 's36', '40960')
    e.salu('s_mul_i32', S(st), S(sNs), '160')
    e.salu('s_add_u32', S(sWoff), S(sWoff), S(st))
    e.salu('s_mul_i32', S(sOo), S(sB), '368640')
    e.salu('s_mul_i32', S(st), S(sBlk), '1280')
    e.salu('s_add_u32', S(sOo), S(sOo), S(st))
    e.salu('s_mul_i32', S(st), S(sNs), '160')
    e.salu('s_add_u32', S(sOo), S(sOo), S(st))
    e.salu('s_mov_b32', S(sCnt), '0')

    def issue(u):
        for i in range(5):
            e.salu('s_add_u32', 'm0', S(sLb), str((u % 8) * 5120 + i * 1024))
            e.dma(V(vWo[i]), S(sWo, 4), S(sWoff), tag=('w', u % 8))
        for rt in range(9):
            e.bload('buffer_load_dwordx4', V(OF(u % 4, rt), 4), V(vOo), S(sOw, 4), S([sO0, sO1, sO2][rt >> 2]), off=(rt & 3) * 1024, tag=('o', u % 8))
        e.salu('s_add_u32', S(sO0), S(sO0), '9216')
        e.salu('s_add_u32', S(sO1), S(sO1), '9216')
        e.salu('s_add_u32', S(sO2), S(sO2), '9216')
        e.salu('s_add_u32', S(sWoff), S(sWoff), '40960')

    def ldw(u):
        e.need([('w', u % 8)])
        for nt in range(5):
            e.ds_read('ds_read_b64_tr_b16', V(WF(u & 1, nt), 2), V(aT), off=(u % 8) * 5120 + nt * 32)
            e.ds_read('ds_read_b64_tr_b16', V(WF(u & 1, nt) + 2, 2), V(aT), off=(u % 8) * 5120 + 2560 + nt * 32)

    for a in range(180):
        e.valu('v_accvgpr_write_b32', A(a), '0')
    for u in range(3):
        issue(u)
    ldw(0)

    def body():
        for u in range(8):
            issue(u + 3)
            n = 0
            for rt in range(9):
                for nt in range(5):
                    e.mfma(A(acc(nt, rt), 4), V(WF(u & 1, nt), 4), V(OF(u % 4, rt), 4), A(acc(nt, rt), 4))
                    n += 1
                    if n == 22:
                        ldw(u + 1)
    save = (e.lines, e.hist, e.pos, e.lds, e.vm)
    vm_in, lds_in = list(e.vm), list(e.lds)
    e.lines = []
    body()
    vm_out = list(e.vm)
    e.lines, e.hist, e.pos, e.lds, e.vm = save
    assert [t for t, _ in vm_out] == [t for t, _ in vm_in], (vm_out, vm_in)
    e.flush_hazards()
    e.label('L_k2_loop')
    body()
    e.salu('s_add_u32', S(sCnt), S(sCnt), '1')
    e.salu('s_cmp_lt_u32', None, S(sCnt), '6')
    e.raw('    s_cbranch_scc1 L_k2_loop')
    e.flush_hazards()
    e.wait_vm0()
    e.barrier()
    tiles = [(nt, rt) for nt in range(5) for rt in range(9)]
    rounds = [tiles[:24], tiles[24:]]
    aR, aRw, vS = 195, 196, 197
    e.valu('v_lshlrev_b32', V(aR), '4', V(vL))
    e.salu('s_mul_i32', S(st), S(sWv), '24576')
    e.valu('v_add_u32', V(aRw), S(st), V(aR))
    e.valu('v_add_u32', V(t2), '49152', V(aR))
    e.valu('v_and_b32', V(t0), '15', V(vL))
    e.valu('v_mul_u32_u24', V(t0), '2560', V(t0))
    e.valu('v_lshrrev_b32', V(t1), '4', V(vL))
    e.valu('v_lshl_add_u32', V(vS), V(t1), '3', V(t0))
    for ri, rd in enumerate(rounds):
        for ti, (nt, rt) in enumerate(rd):
            e.ds_write('ds_write_b128', V(aRw), A(acc(nt, rt), 4), off=ti * 1024)
        e.barrier()
        for w in range(4):
            lab = 'L_k2_r%d_w%d' % (ri, w)
            e.salu('s_cmp_lg_u32', None, S(sWv), str(w))
            e.raw('    s_cbranch_scc1 %s' % lab)
            mine = [(ti, t) for ti, t in enumerate(rd) if ti % 4 == w]
            for n, (ti, (nt, rt)) in enumerate(mine):
                b = n * 16
                for p in range(4):
                    ad, of = (aR, p * 24576 + ti * 1024) if p < 2 else (t2, (p - 2) * 24576 + ti * 1024)
                    e.ds_read('ds_read_b128', V(b + p * 4, 4), V(ad), off=of)
            for n, (ti, (nt, rt)) in enumerate(mine):
                b = n * 16
                for i in range(4):
                    e.valu('v_add_f32', V(b + i), V(b + i), V(b + 4 + i))
                    e.valu('v_add_f32', V(b + 8 + i), V(b + 8 + i), V(b + 12 + i))
                for i in range(4):
                    e.valu('v_add_f32', V(b + i), V(b + i), V(b + 8 + i))
                e.valu('v_cvt_pk_bf16_f32', V(b), V(b), V(b + 1))
                e.valu('v_cvt_pk_bf16_f32', V(b + 1), V(b + 2), V(b + 3))
                e.salu('s_add_u32', S(st), S(sOo), str(rt * 40960 + nt * 32))
                e.bstore('buffer_store_dwordx2', V(b, 2), V(vS), S(sOut, 4), S(st), tag='out')
            e.wait_lds()
            e.label(lab)
            e.flush_hazards()
        if ri == 0:
            e.barrier()
    e.label('L_k2_exit')
    e.raw('    s_endpgm')
    return e.text()


HEADER = open('cdna_kernels/%s.s.ref' % NAME).read().split('; Override launch')[0]


def kd(name, vgpr, acc, sgpr=102):
    return '''.amdhsa_kernel %s
  .amdhsa_next_free_vgpr %d
  .amdhsa_next_free_sgpr %d
  .amdhsa_accum_offset %d
  .amdhsa_group_segment_fixed_size 0
  .amdhsa_kernarg_size 104
  .amdhsa_user_sgpr_count 2
  .amdhsa_user_sgpr_kernarg_segment_ptr 1
  .amdhsa_system_sgpr_workgroup_id_x 1
.end_amdhsa_kernel
''' % (name, vgpr, sgpr, acc)


def main():
    out = HEADER
    out += '; @launch kernel=attn_kernel grid=(256,1,1) block=(512,1,1) lds=163840\n'
    out += '; @launch kernel=oproj_kernel grid=(256,1,1) block=(256,1,1) lds=163840\n'
    out += '.amdgcn_target "amdgcn-amd-amdhsa--gfx950"\n.text\n'
    out += '.globl attn_kernel\n.type attn_kernel,@function\n.globl oproj_kernel\n.type oproj_kernel,@function\n'
    out += gen_k1('dbg' in sys.argv)
    out += gen_k2()
    out += '.section .rodata,"a"\n.p2align 6\n'
    out += kd('attn_kernel', 256, 256)
    out += '.p2align 6\n'
    out += kd('oproj_kernel', 512, 256)
    dst = sys.argv[1] if len(sys.argv) > 1 else 'cdna_kernels/%s.s' % NAME
    open(dst, 'w').write(out)
    print('wrote', dst, len(out), 'bytes')


if __name__ == '__main__':
    main()
```

```python
import re, struct

VCC = ('x', 0)
EXEC = ('x', 1)
M0 = ('x', 2)
SCC = ('x', 3)


def f32hex(x):
    return '0x%08x' % struct.unpack('<I', struct.pack('<f', x))[0]


def regs_of(op):
    op = op.strip()
    if op.startswith('-'):
        op = op[1:]
    if op.startswith('abs(') or op.startswith('|'):
        op = op.strip('|').replace('abs(', '').rstrip(')')
    m = re.fullmatch(r'([vas])(\d+)', op)
    if m:
        return [(m.group(1), int(m.group(2)))]
    m = re.fullmatch(r'([vas])\[(\d+):(\d+)\]', op)
    if m:
        return [(m.group(1), i) for i in range(int(m.group(2)), int(m.group(3)) + 1)]
    if op == 'vcc':
        return [VCC]
    if op == 'exec':
        return [EXEC]
    if op == 'm0':
        return [M0]
    return []


def V(i, n=1):
    return 'v%d' % i if n == 1 else 'v[%d:%d]' % (i, i + n - 1)


def A(i, n=1):
    return 'a%d' % i if n == 1 else 'a[%d:%d]' % (i, i + n - 1)


def S(i, n=1):
    return 's%d' % i if n == 1 else 's[%d:%d]' % (i, i + n - 1)


TRANS = ('v_exp_f32', 'v_log_f32', 'v_rcp_f32', 'v_rsq_f32', 'v_sqrt_f32')


class Em:
    def __init__(self):
        self.lines = []
        self.hist = []
        self.pos = 0
        self.lds = []
        self.vm = []
        self.nnop = 0

    def raw(self, t):
        self.lines.append(t)

    def comment(self, t):
        self.lines.append('    ; ' + t)

    def _nop(self, n):
        while n > 0:
            k = min(n, 16)
            self.lines.append('    s_nop %d' % (k - 1))
            self.pos += k
            self.nnop += k
            n -= k

    def _record(self, kind, rd, wr, **ex):
        self.hist.append(dict(kind=kind, rd=set(rd), wr=set(wr), pos=self.pos, **ex))
        self.pos += 1
        if len(self.hist) > 40:
            self.hist.pop(0)

    def _hazards(self, kind, rd, wr, ex):
        rd = set(rd)
        wr = set(wr)
        need = 0
        for h in self.hist:
            el = self.pos - h['pos'] - 1
            req = 0
            hk = h['kind']
            if hk in ('valu', 'trans'):
                vw = {r for r in h['wr'] if r[0] in 'va'}
                sw = {r for r in h['wr'] if r[0] == 's' or r == VCC}
                if kind == 'mfma' and vw & rd:
                    req = max(req, 2)
                if kind == 'perm' and vw & (rd | wr):
                    req = max(req, 2)
                if kind == 'rfl' and vw & rd:
                    req = max(req, 1)
                if hk == 'trans' and kind in ('valu', 'perm', 'rfl') and vw & rd:
                    req = max(req, 1)
                if sw & rd:
                    if kind in ('vmem', 'dma'):
                        req = max(req, 5)
                    elif kind in ('valu', 'trans', 'mfma'):
                        req = max(req, 2)
                    elif kind == 'salu':
                        req = max(req, 1)
            if hk == 'rfl':
                sw = {r for r in h['wr']}
                if sw & rd:
                    if kind in ('vmem', 'dma'):
                        req = max(req, 5)
                    elif kind in ('valu', 'trans'):
                        req = max(req, 2)
                    elif kind == 'salu':
                        req = max(req, 1)
            if hk == 'perm':
                vw = h['wr']
                if kind == 'mfma' and vw & rd:
                    req = max(req, 2)
                if kind == 'perm' and vw & (rd | wr):
                    req = max(req, 2)
            if hk == 'mfma':
                d = h['wr']
                if kind == 'mfma':
                    c = ex['c']
                    ab = ex['ab']
                    if d & ab:
                        req = max(req, 8)
                    if d & c and d != c:
                        req = max(req, 6)
                    if d & wr and not (d & c):
                        req = max(req, 8)
                elif kind in ('valu', 'trans', 'perm', 'rfl'):
                    if d & (rd | wr):
                        req = max(req, 8)
                    if h['c'] & wr:
                        req = max(req, 3)
                elif kind in ('vmem', 'dma', 'ds'):
                    if d & (rd | wr):
                        req = max(req, 8)
            if hk == 'salu':
                if M0 in h['wr'] and kind == 'dma':
                    req = max(req, 1)
            if hk == 'vmem' and h.get('wide_store'):
                if kind in ('valu', 'trans', 'perm') and h['data'] & wr:
                    req = max(req, 2)
                elif h['data'] & wr:
                    req = max(req, 1)
            need = max(need, req - el)
        if need > 0:
            self._nop(need)

    def _wait_regs(self, regs):
        regs = set(regs)
        idx = -1
        for i, d in enumerate(self.lds):
            if d & regs:
                idx = i
        if idx >= 0:
            n = len(self.lds) - 1 - idx
            n = min(n, 15)
            self.lines.append('    s_waitcnt lgkmcnt(%d)' % n)
            self.pos += 1
            self.lds = self.lds[len(self.lds) - n:] if n else []
        idx = -1
        for i, (t, d) in enumerate(self.vm):
            if d & regs:
                idx = i
        if idx >= 0:
            self._vmwait(len(self.vm) - 1 - idx)

    def _vmwait(self, n):
        n = min(n, 63)
        self.lines.append('    s_waitcnt vmcnt(%d)' % n)
        self.pos += 1
        self.vm = self.vm[len(self.vm) - n:] if n else []

    def _emit(self, kind, text, rd, wr, **ex):
        self._wait_regs(set(rd) | set(wr))
        self._hazards(kind, rd, wr, ex)
        self.lines.append('    ' + text)
        self._record(kind, rd, wr, **ex)

    def valu(self, op, dst, *srcs, mods='', rmw=False):
        rd = []
        for s in srcs:
            rd += regs_of(s)
        wr = regs_of(dst)
        if rmw:
            rd += wr
        kind = 'trans' if op in TRANS else 'valu'
        if op.startswith('v_cndmask') and len(srcs) == 2:
            rd.append(VCC)
        self._emit(kind, '%s %s%s%s' % (op, dst, ''.join(', ' + s for s in srcs), (' ' + mods) if mods else ''), rd, wr)

    def perm(self, op, a, b):
        r = regs_of(a) + regs_of(b)
        self._emit('perm', '%s %s, %s' % (op, a, b), r, r)

    def rfl(self, sdst, vsrc):
        self._emit('rfl', 'v_readfirstlane_b32 %s, %s' % (sdst, vsrc), regs_of(vsrc), regs_of(sdst))

    def mfma(self, d, a, b, c):
        ab = set(regs_of(a) + regs_of(b))
        cc = set(regs_of(c))
        self._emit('mfma', 'v_mfma_f32_16x16x32_bf16 %s, %s, %s, %s' % (d, a, b, c), ab | cc, regs_of(d), ab=ab, c=cc)

    def salu(self, op, dst, *srcs):
        rd = []
        for s in srcs:
            rd += regs_of(s)
        wr = regs_of(dst) if dst is not None else []
        ops = ([dst] if dst is not None else []) + list(srcs)
        self._emit('salu', '%s %s' % (op, ', '.join(ops)), rd, wr)

    def ds_read(self, op, dst, addr, off=0):
        assert 0 <= off < 65536, off
        self._emit('ds', '%s %s, %s%s' % (op, dst, addr, (' offset:%d' % off) if off else ''), regs_of(addr), regs_of(dst))
        self.lds.append(set(regs_of(dst)))

    def ds_write(self, op, addr, data, off=0):
        assert 0 <= off < 65536, off
        self._emit('ds', '%s %s, %s%s' % (op, addr, data, (' offset:%d' % off) if off else ''), regs_of(addr) + regs_of(data), [])
        self.lds.append(set())

    def dma(self, voff, srd, soff, off=0, tag=None, nt=False):
        assert 0 <= off < 4096
        rd = regs_of(voff) + regs_of(srd) + regs_of(soff) + [M0]
        self._emit('dma', 'buffer_load_dwordx4 %s, %s, %s offen%s%s lds' % (voff, srd, soff, (' offset:%d' % off) if off else '', ' nt' if nt else ''), rd, [])
        self.vm.append((tag, set()))

    def bload(self, op, dst, voff, srd, soff, off=0, tag=None):
        assert 0 <= off < 4096
        rd = regs_of(voff) + regs_of(srd) + regs_of(soff)
        self._emit('vmem', '%s %s, %s, %s, %s offen%s' % (op, dst, voff, srd, soff, (' offset:%d' % off) if off else ''), rd, regs_of(dst))
        self.vm.append((tag, set(regs_of(dst))))

    def bstore(self, op, data, voff, srd, soff, off=0, tag=None):
        assert 0 <= off < 4096
        rd = regs_of(voff) + regs_of(srd) + regs_of(soff) + regs_of(data)
        wide = op.endswith('x4') or op.endswith('x3')
        self._emit('vmem', '%s %s, %s, %s, %s offen%s' % (op, data, voff, srd, soff, (' offset:%d' % off) if off else ''), rd, [],
                   wide_store=wide, data=set(regs_of(data)))
        self.vm.append((tag, set()))

    def need(self, tags):
        tags = set(tags)
        idx = -1
        for i, (t, d) in enumerate(self.vm):
            if t in tags:
                idx = i
        if idx >= 0:
            self._vmwait(len(self.vm) - 1 - idx)

    def wait_lds(self):
        if self.lds:
            self.lines.append('    s_waitcnt lgkmcnt(0)')
            self.pos += 1
            self.lds = []

    def wait_vm0(self):
        self.lines.append('    s_waitcnt vmcnt(0)')
        self.pos += 1
        self.vm = []

    def barrier(self):
        self.wait_lds()
        import os
        if os.environ.get('XSLEEP') and getattr(self, 'k1', False):
            self.lines.append('    s_sleep %s' % os.environ['XSLEEP'])
        self.lines.append('    s_barrier')
        self.pos += 1

    def flush_hazards(self):
        self._nop(10)
        self.hist = []

    def cond_begin(self):
        self._cpos = self.pos

    def cond_end(self, name):
        d = self.pos - self._cpos
        for h in self.hist:
            if h['pos'] < self._cpos:
                h['pos'] += d
        self.lines.append(name + ':')

    def label(self, name):
        self.lines.append(name + ':')

    def text(self):
        return '\n'.join(self.lines) + '\n'
```

```python
import math, sys, os
NOMFMA = os.environ.get('NOMFMA')
K0SEG = int(os.environ.get('K0SEG', '1'))
K1SEG = int(os.environ.get('K1SEG', '8'))
USE_NT = not os.environ.get('NONT')
USE_PF = not os.environ.get('NOPF')
NOSM = os.environ.get('NOSM')
from em import Em, V, A, S, f32hex

NAME = 'concat_heads__gqa_block_cached__mha_block_cached__near_ridge'

TILE = 24576
VW = 0
KR = 73728
PX = 122880
PXB = 18432
SML = 159744
SMM = SML + 2304
LDS1 = 163840
XBUF = [PX, PX + PXB, KR + TILE]
XBASE = KR + TILE

SCALE_C = (192 ** -0.5) * math.log2(math.e)


def weave(e, main, fills):
    nm = sum(1 for k, _ in main if k == 'm')
    after = {}
    for lo, hi, fl in fills:
        if not fl:
            continue
        hi = min(hi, nm - 1)
        lo = min(lo, hi)
        if nm == 0:
            after.setdefault(-1, []).extend(fl)
            continue
        span = hi - lo + 1
        for i, f in enumerate(fl):
            after.setdefault(lo + (i * span) // len(fl), []).append(f)
    for f in after.get(-1, []):
        f()
    i = 0
    for k, fn in main:
        fn()
        if k == 'm':
            for f in after.get(i, []):
                f()
            i += 1


def dpos(g, n, nm):
    if g == 0:
        return (0, n)
    lo = max(0, nm - 3 - n)
    return (lo, lo + n)


class K1:
    sK, sVv, sW, sX, sO = 8, 12, 16, 20, 24
    sWv, sS, sW3, sW2 = 28, 29, 30, 31
    sBH, sHW, sXB, sOB, sCnt, sC = 32, 33, 34, 35, 36, 37
    sT = [38, 39, 40]
    sBHn, sHWn = 41, 42
    sPo, sSo = 43, 44
    st0, st1, st2 = 45, 46, 47

    def __init__(self, e, grp, dbg=None):
        self.e = e
        self.g = grp
        self.dbg = dbg
        if grp == 0:
            self.qts = [0, 1, 2, 3, 4]
            self.pts = [0, 1, 2, 3]
            self.rt0 = 0
        else:
            self.qts = [5, 6, 7, 8]
            self.pts = [4, 5, 6, 7, 8]
            self.rt0 = 4
        nq, np_ = len(self.qts), len(self.pts)
        self.nq, self.np = nq, np_
        self.QF = 0
        self.OA = nq * 24
        self.SS = self.OA + np_ * 12
        assert self.SS + nq * 4 <= 188
        r = 188
        self.KF = [r, r + 4]; r += 8
        self.VF = [r, r + 4, r + 8]; r += 12
        self.PF = [r, r + 4, r + 8]; r += 12
        self.mq = [r, r + 4]; r += 8
        self.m1 = [r, r + 1]; r += 2
        self.l = r; r += 5
        self.al = r; r += 5
        self.vLane = r; r += 1
        self.vKV = r; r += 1
        self.vW = r; r += 1
        self.vX = r; r += 1
        self.aK = [r, r + 1]; r += 2
        self.aV = [r, r + 1, r + 2]; r += 3
        self.aP = r; r += 1
        self.aPw = r; r += 1
        self.aM = r; r += 1
        self.t0 = r; r += 1
        self.t1 = r; r += 1
        self.t2 = r; r += 1
        self.t3 = r; r += 1
        assert r <= 256, r
        self.aX = self.aK
        self.aW = self.aV
        self.vslot = None

    def qf(self, iq, ks):
        return self.QF + iq * 24 + ks * 4

    def acc(self, iq, dt):
        return self.qf(iq, 3 + dt)

    def oa(self, ip, dt):
        return self.OA + ip * 12 + dt * 4

    def ss(self, iq):
        return self.SS + iq * 4

    def mreg(self, st, idx):
        return self.m1[st] if idx == 0 else self.mq[st] + idx - 1

    def dma_tile(self, kind, idx, nxt=False):
        e = self.e
        fns = []
        tag = (kind, idx, nxt)
        if kind == 'W':
            slot = VW + (idx % 3) * TILE
            base, add, srd, voff = (self.sHWn if nxt else self.sHW), idx * 786432, self.sW, self.vW
        elif kind == 'V':
            slot = VW + ((10 + idx) % 3) * TILE
            base, add, srd, voff = (self.sBHn if nxt else self.sBH), idx * TILE, self.sVv, self.vKV
        else:
            slot = KR + (idx & 1) * TILE
            base, add, srd, voff = (self.sBHn if nxt else self.sBH), idx * TILE, self.sK, self.vKV
        for i in range(3):
            def f(i=i):
                if i == 0:
                    e.salu('s_add_u32', S(self.st0), S(base), str(add))
                e.salu('s_add_u32', 'm0', S(self.sW3), str(slot + i * 1024 - i * 128))
                e.dma(V(voff), S(srd, 4), S(self.st0), off=i * 128, tag=tag, nt=(kind != 'W' and USE_NT))
            fns.append(f)
        return fns

    def xbuf(self, c):
        return XBUF[c % 3] if c <= 5 else XBUF[c & 1]

    def dma_x(self, c):
        e = self.e
        fns = []
        tag = ('x', c, False)
        for n in range(3):
            def f(n=n):
                e.salu('s_add_u32', S(self.st1), S(self.sXB), str(c * 128 + 9216 * n))
                if n == 0:
                    e.salu('s_add_u32', 'm0', S(self.sW2), str(self.xbuf(c)))
                if n == 2:
                    e.salu('s_mov_b64', 'exec', '0xffff')
                e.dma(V(self.vX), S(self.sX, 4), S(self.st1), off=n * 1024, tag=tag)
                if n == 2:
                    e.salu('s_mov_b64', 'exec', '-1')
            fns.append(f)
        return fns

    def dma_x_joined(self, c):
        fl = self.dma_x(c)

        def f():
            for x in fl:
                x()
        return [f]

    def l2_prefetch(self):
        e = self.e

        def fw():
            e.valu('v_min_u32', V(self.t2), '29', V(self.vLane))
            e.valu('v_mul_u32_u24', V(self.t3), '43', V(self.t2))
            e.valu('v_lshrrev_b32', V(self.t3), '7', V(self.t3))
            e.valu('v_mul_u32_u24', V(self.t1), '3', V(self.t3))
            e.valu('v_sub_u32', V(self.t2), V(self.t2), V(self.t1))
            e.valu('v_lshlrev_b32', V(self.t2), '7', V(self.t2))
            e.valu('v_mul_u32_u24', V(self.t3), '12288', V(self.t3))
            e.valu('v_add_u32', V(self.t2), V(self.t2), V(self.t3))
            e.salu('s_add_u32', S(self.st2), 's74', S(self.sHWn))
            e.bload('buffer_load_dword', V(self.t3), V(self.t2), S(self.sW, 4), S(self.st2), tag='pf')

        def fx():
            e.valu('v_min_u32', V(self.t2), '44', V(self.vLane))
            e.valu('v_lshlrev_b32', V(self.t2), '7', V(self.t2))
            e.raw('    buffer_load_dword %s, %s, s[%d:%d], s75 offen' % (V(self.t3), V(self.t2), self.sX, self.sX + 3))
            e.vm.append(('pf', set()))
            e.pos += 1
        def fo():
            e.valu('v_min_u32', V(self.t2), '59', V(self.vLane))
            e.valu('v_lshlrev_b32', V(self.t2), '7', V(self.t2))
            e.raw('    buffer_load_dword %s, %s, s[88:91], s92 offen' % (V(self.t3), V(self.t2)))
            e.vm.append(('pf', set()))
            e.pos += 1
        self.fo = fo
        return [fw, fx]

    def lane_fields(self, q, g, r=None, c=None):
        e = self.e
        e.valu('v_and_b32', V(q), '15', V(self.vLane))
        e.valu('v_lshrrev_b32', V(g), '4', V(self.vLane))
        if r is not None:
            e.valu('v_bfe_u32', V(r), V(self.vLane), '2', '2')
            e.valu('v_and_b32', V(c), '3', V(self.vLane))

    def setup_tr_addr(self, dst, kindW):
        e = self.e
        q, g, r, c, sw, t, u, base = [self.KF[0] + i for i in range(8)]
        self.lane_fields(q, g, r, c)
        if kindW:
            e.valu('v_lshrrev_b32', V(sw), '1', V(r))
            e.valu('v_and_b32', V(t), '1', V(g))
            e.valu('v_lshl_add_u32', V(sw), V(t), '1', V(sw))
            e.valu('v_lshlrev_b32', V(sw), '1', V(sw))
            e.valu('v_mul_u32_u24', V(base), '3072', V(g))
            e.valu('v_lshl_add_u32', V(base), V(r), '7', V(base))
        else:
            e.valu('v_lshrrev_b32', V(sw), '1', V(r))
            e.valu('v_lshl_add_u32', V(sw), V(g), '1', V(sw))
            e.valu('v_and_b32', V(sw), '3', V(sw))
            e.valu('v_lshlrev_b32', V(sw), '1', V(sw))
            e.valu('v_lshrrev_b32', V(t), '1', V(g))
            e.valu('v_mul_u32_u24', V(base), '3072', V(t))
            e.valu('v_and_b32', V(t), '1', V(g))
            e.valu('v_lshl_add_u32', V(t), V(t), '2', V(r))
            e.valu('v_lshl_add_u32', V(base), V(t), '7', V(base))
        e.valu('v_and_b32', V(t), '1', V(c))
        e.valu('v_lshl_add_u32', V(base), V(t), '3', V(base))
        e.valu('v_lshrrev_b32', V(c), '1', V(c))
        for dt in range(3):
            e.salu('s_lshl_b32', S(self.st0), S(self.sT[dt]), '1')
            e.valu('v_add_u32', V(t), S(self.st0), V(c))
            e.valu('v_lshrrev_b32', V(u), '3', V(t))
            e.valu('v_and_b32', V(t), '7', V(t))
            e.valu('v_xor_b32', V(t), V(t), V(sw))
            e.valu('v_lshl_add_u32', V(t), V(t), '4', V(base))
            e.valu('v_lshl_add_u32', V(dst[dt]), V(u), '10', V(t))

    def setup_qproj_addr(self):
        e = self.e
        self.setup_tr_addr(self.aW, True)
        q, g, sw, t = [self.KF[0] + i for i in range(4)]
        self.lane_fields(q, g)
        e.valu('v_and_b32', V(sw), '6', V(q))
        e.valu('v_xor_b32', V(t), V(g), V(sw))
        e.valu('v_lshlrev_b32', V(t), '4', V(t))
        e.valu('v_lshl_add_u32', V(t), V(q), '7', V(t))
        e.valu('v_add_u32', V(self.aX[0]), str(XBASE), V(t))
        e.valu('v_xor_b32', V(self.aX[1]), '64', V(self.aX[0]))

    def setup_attn_addr(self):
        e = self.e
        self.setup_tr_addr(self.aV, False)
        self.vslot = 0
        q, g, sw, t, u = [self.KF[0] + i for i in range(5)]
        self.lane_fields(q, g)
        e.valu('v_and_b32', V(sw), '6', V(q))
        e.valu('v_xor_b32', V(t), V(g), V(sw))
        e.valu('v_lshlrev_b32', V(t), '4', V(t))
        e.valu('v_and_b32', V(u), '7', V(q))
        e.valu('v_lshl_add_u32', V(t), V(u), '7', V(t))
        e.valu('v_lshrrev_b32', V(u), '3', V(q))
        e.valu('v_mul_u32_u24', V(u), '3072', V(u))
        e.salu('s_mul_i32', S(self.st0), S(self.sS), '6144')
        e.salu('s_add_u32', S(self.st0), S(self.st0), str(KR))
        e.valu('v_add3_u32', V(self.aK[0]), V(t), V(u), S(self.st0))
        e.valu('v_xor_b32', V(self.aK[1]), '64', V(self.aK[0]))

    def set_vslot(self, slot):
        e = self.e
        d = slot - self.vslot
        if d:
            for dt in range(3):
                if d > 0:
                    e.valu('v_add_u32', V(self.aV[dt]), str(d), V(self.aV[dt]))
                else:
                    e.valu('v_subrev_u32', V(self.aV[dt]), str(-d), V(self.aV[dt]))
            self.vslot = slot

    def seg_q(self, c):
        e = self.e
        nq = self.nq
        e.comment('---- Q seg %d' % c)
        if c == 0:
            self.setup_qproj_addr()
            t = self.KF[0]
            e.valu('v_mov_b32', V(t), '0xff800000')
            e.valu('v_mov_b32', V(t + 1), '0xff800000')
            e.valu('v_lshlrev_b32', V(t + 2), '3', V(self.vLane))
            e.valu('v_add_u32', V(t + 2), str(SMM), V(t + 2))
            for k in range(3):
                e.ds_write('ds_write_b64', V(t + 2), V(t, 2), off=512 * k)
        slot = VW + (c % 3) * TILE
        xo = self.xbuf(c) - XBASE
        WF = [self.OA, self.OA + 12]
        XF = [self.OA + 24, self.OA + 28, self.OA + 32]
        dm = []
        if c + 2 <= 9:
            dm += self.dma_tile('W', c + 2)
        xs = {0: 1, 1: 3, 2: 4, 3: 5, 4: 6, 5: 7, 7: 8, 8: 9}
        if c in xs:
            dm += self.dma_x_joined(xs[c])
        if c == K0SEG:
            dm += self.dma_tile('K', 0)
        if c == K1SEG:
            dm += self.dma_tile('K', 1)
        if c + 2 > 9:
            dm += self.dma_tile('V', c - 8)
        main = []

        def ldw(ks, dt):
            def f():
                e.ds_read('ds_read_b64_tr_b16', V(WF[ks] + dt * 4, 2), V(self.aW[dt]), off=slot + ks * 12288)
                e.ds_read('ds_read_b64_tr_b16', V(WF[ks] + dt * 4 + 2, 2), V(self.aW[dt]), off=slot + ks * 12288 + 512)
            return f

        def ldx(idx):
            ks, iq = divmod(idx, nq)

            def f():
                e.ds_read('ds_read_b128', V(XF[idx % 3], 4), V(self.aX[ks]), off=xo + self.qts[iq] * 2048)
            return f
        for dt in range(3):
            main.append(('o', ldw(0, dt)))
        for idx in range(3):
            main.append(('o', ldx(idx)))
        for dt in range(3):
            main.append(('o', ldw(1, dt)))
        for idx in range(2 * nq):
            ks, iq = divmod(idx, nq)
            for dt in range(3):
                def f(ks=ks, iq=iq, dt=dt, idx=idx):
                    a = self.acc(iq, dt)
                    e.mfma(V(a, 4), V(WF[ks] + dt * 4, 4), V(XF[idx % 3], 4), '0' if (c == 0 and ks == 0) else V(a, 4))
                main.append(('m', f))
            if idx + 3 < 2 * nq:
                main.append(('o', ldx(idx + 3)))
        weave(e, main, [dpos(self.g, len(dm), 6 * nq) + (dm,)])
        if c < 9:
            e.need([('W', c + 1, False), ('x', c + 1, False)])
            e.barrier()
            self.stamp()

    def exchange(self):
        e = self.e
        nq = self.nq
        for iq in range(nq):
            for dt in range(3):
                a = self.acc(iq, dt)
                e.valu('v_cvt_pk_bf16_f32', V(a), V(a), V(a + 1))
                e.valu('v_cvt_pk_bf16_f32', V(a + 1), V(a + 2), V(a + 3))
        q, g, base = self.KF[0], self.KF[0] + 1, self.KF[0] + 2
        aQw = [self.KF[0] + 3, self.KF[0] + 4, self.KF[0] + 5]
        aQr = self.KF[0] + 6
        self.lane_fields(q, g)
        e.valu('v_mul_u32_u24', V(base), '208', V(q))
        e.valu('v_add_u32', V(base), str(PX), V(base))
        e.valu('v_lshl_add_u32', V(aQr), V(g), '4', V(base))
        e.valu('v_lshl_add_u32', V(base), V(g), '3', V(base))
        for dt in range(3):
            e.salu('s_sub_u32', S(self.st0), S(self.sT[dt]), '6')
            e.salu('s_cmp_ge_u32', None, S(self.sT[dt]), '6')
            e.salu('s_cselect_b32', S(self.st0), S(self.st0), S(self.sT[dt]))
            e.salu('s_lshl_b32', S(self.st0), S(self.st0), '5')
            e.valu('v_add_u32', V(aQw[dt]), S(self.st0), V(base))

        def wr_block(lab, ge):
            e.salu('s_cmp_ge_u32', None, S(self.sS), '2')
            e.raw('    s_cbranch_scc%d %s' % (0 if ge else 1, lab))
            for iq in range(nq):
                for dt in range(3):
                    e.ds_write('ds_write_b64', V(aQw[dt]), V(self.acc(iq, dt), 2), off=self.qts[iq] * 3328)
            e.wait_lds()
            e.label(lab)
            e.flush_hazards()
        wr_block('L_exA_%d' % self.g, False)
        e.barrier()
        self.stamp()
        for f in self.dma_tile('V', 2):
            f()
        for iq in range(nq):
            for ks in range(3):
                e.ds_read('ds_read_b128', V(self.qf(iq, ks), 4), V(aQr), off=self.qts[iq] * 3328 + ks * 64)
        e.barrier()
        self.stamp()
        wr_block('L_exB_%d' % self.g, True)
        e.need([('K', 0, False)])
        e.barrier()
        self.stamp()
        for iq in range(nq):
            for ks in range(3):
                e.ds_read('ds_read_b128', V(self.qf(iq, 3 + ks), 4), V(aQr), off=self.qts[iq] * 3328 + ks * 64)
        e.wait_lds()
        self.setup_attn_addr()
        for idx in range(5):
            e.valu('v_mov_b32', V(self.mreg(1, idx)), '0xff800000')
            e.valu('v_mov_b32', V(self.l + idx), '0')

    def seg_a(self, j):
        e = self.e
        nq, np_ = self.nq, self.np
        doB = 0 <= j <= 7
        doC = 1 <= j <= 8
        doA = -1 <= j <= 6
        e.comment('---- attn seg %d' % j)
        dm = []
        dm2 = []
        if 0 <= j <= 5:
            dm += self.dma_tile('K', j + 2)
        if 1 <= j <= 5:
            dm2 += self.dma_tile('V', j + 2)
        if j == 6:
            dm2 += self.dma_tile('W', 0, True)
        if j == 7:
            dm2 += self.dma_tile('W', 1, True)
        if j == 8:
            dm += self.dma_x_joined(0)
            dm += self.dma_x_joined(2)
        if USE_PF and j == 4:
            dm2 += self.l2_prefetch()
        mid = 1 <= j <= 7
        new, old = (j & 1), ((j + 1) & 1)
        nX = (nq + 1) // 2 if (doA and doB) else nq
        sM = 76
        fS, fBx, fBy = [], [], []
        if doB:
            mo = (j & 1) * 768
            e.ds_read('ds_read_b32', V(self.m1[new]), V(self.aM), off=mo + (3 + self.rt0) * 4)
            e.ds_read('ds_read_b128', V(self.mq[new], 4), V(self.aM), off=mo + (4 + self.rt0) * 4)
            R5 = range(5)
            for idx in R5:
                fS.append(lambda idx=idx: e.valu('v_mul_f32', V(self.mreg(new, idx)), S(self.sC), V(self.mreg(new, idx))))
            for idx in R5:
                fS.append(lambda idx=idx: e.valu('v_sub_f32', V(self.al + idx), V(self.mreg(new, idx)), V(self.mreg(old, idx))))
            for idx in R5:
                fS.append(lambda idx=idx: e.valu('v_cmp_lt_f32', S(sM + 2 + 2 * idx, 2), '4.0', V(self.al + idx)))
            for idx in R5:
                fS.append(lambda idx=idx: e.valu('v_cndmask_b32', V(self.mreg(new, idx)), V(self.mreg(old, idx)), V(self.mreg(new, idx)), S(sM + 2 + 2 * idx, 2)))

            def fbr():
                e.salu('s_or_b64', S(sM, 2), S(sM + 2, 2), S(sM + 4, 2))
                e.salu('s_or_b64', S(sM + 6, 2), S(sM + 6, 2), S(sM + 8, 2))
                e.salu('s_or_b64', S(sM, 2), S(sM, 2), S(sM + 10, 2))
                e.salu('s_or_b64', S(sM, 2), S(sM, 2), S(sM + 6, 2))
                lab = 'L_nl_%d_%d' % (self.g, j)
                e.raw('    s_cbranch_scc0 %s' % lab)
                e.cond_begin()
                for idx in R5:
                    e.valu('v_sub_f32', V(self.al + idx), V(self.mreg(old, idx)), V(self.mreg(new, idx)))
                for idx in R5:
                    e.valu('v_exp_f32', V(self.al + idx), V(self.al + idx))
                for iq in range(nq):
                    idx = self.qts[iq] - self.rt0
                    e.valu('v_mul_f32', V(self.l + idx), V(self.al + idx), V(self.l + idx))
                e.cond_end(lab)
            fS.append(fbr)

            def b_ops(tiles):
                fl = []
                for iq in tiles:
                    idx = self.qts[iq] - self.rt0
                    s0 = self.ss(iq)
                    for i in range(4):
                        fl.append(lambda s0=s0, i=i, idx=idx: e.valu('v_fma_f32', V(s0 + i), V(s0 + i), S(self.sC), '-' + V(self.mreg(new, idx))))
                for iq in tiles:
                    s0 = self.ss(iq)
                    for i in range(4):
                        fl.append(lambda s0=s0, i=i: e.valu('v_exp_f32', V(s0 + i), V(s0 + i)))
                for iq in tiles:
                    idx = self.qts[iq] - self.rt0
                    s0 = self.ss(iq)
                    lr = self.l + idx
                    fl.append(lambda s0=s0, lr=lr: e.valu('v_add_f32', V(lr), V(lr), V(s0)))
                    fl.append(lambda s0=s0: e.valu('v_add_f32', V(self.t0), V(s0 + 1), V(s0 + 2)))
                    fl.append(lambda s0=s0, lr=lr: e.valu('v_add_f32', V(lr), V(lr), V(s0 + 3)))
                    fl.append(lambda s0=s0: e.valu('v_cvt_pk_bf16_f32', V(s0), V(s0), V(s0 + 1)))
                    fl.append(lambda lr=lr: e.valu('v_add_f32', V(lr), V(lr), V(self.t0)))
                    fl.append(lambda s0=s0: e.valu('v_cvt_pk_bf16_f32', V(s0 + 1), V(s0 + 2), V(s0 + 3)))
                    fl.append(lambda s0=s0, iq=iq: e.ds_write('ds_write_b64', V(self.aPw), V(s0, 2), off=(j & 1) * PXB + self.qts[iq] * 2048))
                return fl
            fBx = b_ops(range(nX))
            fBy = b_ops(range(nX, nq))
        if NOSM:
            fS, fBx, fBy = [], [], []
        fB = fS + fBx
        mainC = []
        kslot = ((j + 1) & 1) * TILE
        passes = [list(range(nX)), list(range(nX, nq))] if nX < nq else [list(range(nq))]
        kseq = [(p, ks) for p in range(len(passes)) for ks in range(6)]
        KBUF = [self.KF[0], self.KF[1], self.PF[0], self.PF[1], self.PF[2]]

        def ldk(n):
            p, ks = kseq[n]

            def f():
                e.ds_read('ds_read_b128', V(KBUF[n % 5], 4), V(self.aK[ks & 1]), off=kslot + (ks >> 1) * 1024)
            return f
        if doC:
            self.set_vslot(VW + ((10 + j - 1) % 3) * TILE)
            pbuf = ((j - 1) & 1) * PXB

            def ldv(k, dt):
                def f():
                    e.ds_read('ds_read_b64_tr_b16', V(self.VF[dt], 2), V(self.aV[dt]), off=(4 * k) * 3072)
                    e.ds_read('ds_read_b64_tr_b16', V(self.VF[dt] + 2, 2), V(self.aV[dt]), off=(4 * k + 2) * 3072)
                return f

            def ldp(idx):
                k, ip = divmod(idx, np_)

                def f():
                    e.ds_read('ds_read_b128', V(self.PF[idx % 3], 4), V(self.aP), off=pbuf + (self.pts[ip] * 2 + k) * 1024)
                return f
            for dt in range(3):
                mainC.append(('o', ldv(0, dt)))
            for idx in range(3):
                mainC.append(('o', ldp(idx)))
            for idx in range(2 * np_):
                k, ip = divmod(idx, np_)
                for dt in range(3):
                    def f(k=k, ip=ip, dt=dt, idx=idx):
                        o = self.oa(ip, dt)
                        e.mfma(V(o, 4), V(self.VF[dt], 4), V(self.PF[idx % 3], 4), '0' if (j == 1 and k == 0) else V(o, 4))
                    mainC.append(('m', f))
                    if k == 0 and ip == np_ - 1:
                        mainC.append(('o', ldv(1, dt)))
                if idx + 3 < 2 * np_:
                    mainC.append(('o', ldp(idx + 3)))
            weave(e, mainC, [(0, 6 * np_ - 2, fB), dpos(self.g, len(dm), 6 * np_) + (dm,)])
            dm = []
        else:
            if doA:
                ldk(0)()
                ldk(1)()
            for f in fB:
                f()
        if j == 7:
            self.l_exchange()
        if mid:
            if doA:
                e.need([('K', j + 1, False)])
            e.barrier()
            self.stamp()
            if doA:
                ldk(0)()
                ldk(1)()
        dm += dm2
        if doA:
            for n in range(2, 5):
                ldk(n)()
        if doB and j >= 1 and not NOSM:
            lab = 'L_nr_%d_%d' % (self.g, j)
            e.salu('s_cmp_eq_u64', None, S(sM, 2), '0')
            e.raw('    s_cbranch_scc1 %s' % lab)
            e.cond_begin()
            for ip in range(np_):
                idx = self.pts[ip] - self.rt0
                for dt in range(3):
                    for i in range(4):
                        o = self.oa(ip, dt) + i
                        e.valu('v_mul_f32', V(o), V(self.al + idx), V(o))
            e.cond_end(lab)
        if doA:
            mo = ((j + 1) & 1) * 768

            def mx(iq):
                def f():
                    s0 = self.ss(iq)
                    t = self.t2 if iq & 1 else self.t1
                    e.valu('v_max3_f32', V(t), V(s0), V(s0 + 1), V(s0 + 2))
                    e.valu('v_max_f32', V(t), V(t), V(s0 + 3))
                    e.ds_write(os.environ.get('MAXOP', 'ds_max_f32'), V(self.aM), V(t), off=mo + (3 + self.qts[iq]) * 4)
                return f
            mainA = []
            for n, (p, ks) in enumerate(kseq):
                for iq in passes[p]:
                    def f(n=n, ks=ks, iq=iq):
                        s0 = self.ss(iq)
                        e.mfma(V(s0, 4), V(KBUF[n % 5], 4), V(self.qf(iq, ks), 4), '0' if ks == 0 else V(s0, 4))
                    mainA.append(('m', f))
                if n + 5 < len(kseq):
                    mainA.append(('o', ldk(n + 5)))
            nm = 6 * nq
            fills = [dpos(self.g, len(dm), nm) + (dm,)]
            if len(passes) == 2:
                fills.append((0, 6 * nX - 2, fBy))
                fills.append((6 * nX + 3, nm - 1, [mx(iq) for iq in passes[0]]))
            weave(e, mainA, fills)
            dm = []
            for iq in passes[-1]:
                mx(iq)()
        else:
            for f in dm:
                f()
        if j == 8:
            self.epilogue()
        nd = []
        if j + 1 <= 0:
            nd.append(('K', j + 2, False))
        if 1 <= j + 1 <= 8:
            nd.append(('V', j, False))
        if j == 8:
            nd = [('W', 0, True), ('x', 0, False)]
        e.need(nd)
        e.barrier()
        self.stamp()

    def l_exchange(self):
        e = self.e
        idxs = [qt - self.rt0 for qt in self.qts]
        q, g, ad = self.QF, self.QF + 1, self.QF + 2
        self.lane_fields(q, g)
        pack = idxs[-4:]
        a, b, c, d = [self.l + i for i in pack]
        e.perm('v_permlane16_swap_b32', V(a), V(b))
        e.perm('v_permlane16_swap_b32', V(c), V(d))
        e.valu('v_add_f32', V(a), V(a), V(b))
        e.valu('v_add_f32', V(c), V(c), V(d))
        e.perm('v_permlane32_swap_b32', V(a), V(c))
        e.valu('v_add_f32', V(a), V(a), V(c))
        rtp = pack[0] + self.rt0
        e.salu('s_lshl_b32', S(self.st0), S(self.sS), '2')
        e.salu('s_add_u32', S(self.st0), S(self.st0), str(SML))
        e.valu('v_lshlrev_b32', V(ad), '4', V(q))
        e.valu('v_add_u32', V(ad), S(self.st0), V(ad))
        e.valu('v_lshl_add_u32', V(ad + 1), V(g), '8', V(ad))
        e.ds_write('ds_write_b32', V(ad + 1), V(a), off=rtp * 256)
        if len(idxs) == 5:
            x = self.l + idxs[0]
            y = self.QF + 5
            e.valu('v_mov_b32', V(y), V(x))
            e.perm('v_permlane16_swap_b32', V(x), V(y))
            e.valu('v_add_f32', V(x), V(x), V(y))
            e.valu('v_mov_b32', V(y), V(x))
            e.perm('v_permlane32_swap_b32', V(x), V(y))
            e.valu('v_add_f32', V(x), V(x), V(y))
            e.ds_write('ds_write_b32', V(ad), V(x), off=(idxs[0] + self.rt0) * 256)

    def epilogue(self):
        e = self.e
        np_ = self.np
        q, ad, vo = self.QF, self.QF + 1, self.QF + 2
        e.valu('v_and_b32', V(q), '15', V(self.vLane))
        e.valu('v_lshlrev_b32', V(ad), '4', V(q))
        e.valu('v_add_u32', V(ad), str(SML), V(ad))
        e.valu('v_lshlrev_b32', V(vo), '4', V(self.vLane))
        L = self.QF + 4
        for ip in range(np_):
            e.ds_read('ds_read_b128', V(L + ip * 4, 4), V(ad), off=self.pts[ip] * 256)
        for ip in range(np_):
            x = L + ip * 4
            e.valu('v_add_f32', V(x), V(x), V(x + 1))
            e.valu('v_add_f32', V(x + 2), V(x + 2), V(x + 3))
            e.valu('v_add_f32', V(x), V(x), V(x + 2))
            e.valu('v_rcp_f32', V(x), V(x))
        for ip in range(np_):
            x = L + ip * 4
            o = self.oa(ip, 0)
            for i in range(12):
                e.valu('v_mul_f32', V(o + i), V(x), V(o + i))
            for i in range(6):
                e.valu('v_cvt_pk_bf16_f32', V(o + i), V(o + 2 * i), V(o + 2 * i + 1))
            rt = self.pts[ip]
            e.salu('s_add_u32', S(self.st0), S(self.sOB), S(self.sPo))
            e.salu('s_add_u32', S(self.st1), S(self.sOB), S(self.sSo))
            if rt >> 2:
                e.salu('s_add_u32', S(self.st0), S(self.st0), str((rt >> 2) * 4096))
                e.salu('s_add_u32', S(self.st1), S(self.st1), str((rt >> 2) * 4096))
            e.bstore('buffer_store_dwordx4', V(o, 4), V(vo), S(self.sO, 4), S(self.st0), off=(rt & 3) * 1024, tag='ost')
            e.bstore('buffer_store_dwordx2', V(o + 4, 2), V(vo), S(self.sO, 4), S(self.st1), off=(rt & 3) * 1024, tag='ost')

    def stamp(self):
        if not self.dbg:
            return
        e = self.e
        e.raw('    s_memtime s[70:71]')
        e.raw('    s_waitcnt lgkmcnt(0)')
        e.lds = []
        e.valu('v_mov_b32', V(self.t1), 's70')
        e.raw('    buffer_store_dword %s, off, s[%d:%d], s72' % (V(self.t1), self.sO, self.sO + 3))
        e.vm.append(('stamp', set()))
        e.pos += 3
        e.salu('s_add_u32', 's72', 's72', '4')

    def rstamp(self):
        if not self.dbg:
            return
        e = self.e
        e.raw('    s_memrealtime s[70:71]')
        e.raw('    s_waitcnt lgkmcnt(0)')
        e.lds = []
        e.valu('v_mov_b32', V(self.t1), 's70')
        e.raw('    buffer_store_dword %s, off, s[%d:%d], s72' % (V(self.t1), self.sO, self.sO + 3))
        e.vm.append(('stamp', set()))
        e.pos += 3
        e.salu('s_add_u32', 's72', 's72', '4')

    def head(self):
        for c in range(10):
            self.seg_q(c)
        self.exchange()
        for j in range(-1, 9):
            self.seg_a(j)

    def retag(self):
        self.e.vm = [((t[0], t[1], False) if isinstance(t, tuple) else t, d) for t, d in self.e.vm]

    def body(self):
        e = self.e
        g = self.g
        ln, t, u = self.vLane, self.t0, self.t1
        e.valu('v_and_b32', V(ln), '63', 'v0')
        e.valu('v_lshrrev_b32', V(t), '3', V(ln))
        e.valu('v_lshrrev_b32', V(u), '4', V(ln))
        e.valu('v_lshlrev_b32', V(u), '1', V(u))
        e.valu('v_and_b32', V(self.t2), '7', V(ln))
        e.valu('v_xor_b32', V(u), V(u), V(self.t2))
        e.valu('v_lshlrev_b32', V(u), '4', V(u))
        e.valu('v_mul_u32_u24', V(self.vKV), '384', V(t))
        e.valu('v_add3_u32', V(self.vKV), V(self.vKV), V(u), S(self.sW3))
        e.salu('s_and_b32', S(self.st0), S(self.sWv), '1')
        e.salu('s_lshl_b32', S(self.st0), S(self.st0), '2')
        e.valu('v_bfe_u32', V(u), V(ln), '4', '1')
        e.valu('v_lshlrev_b32', V(u), '1', V(u))
        e.valu('v_or_b32', V(u), S(self.st0), V(u))
        e.valu('v_xor_b32', V(u), V(u), V(self.t2))
        e.valu('v_lshlrev_b32', V(u), '4', V(u))
        e.valu('v_mul_u32_u24', V(self.vW), '12288', V(t))
        e.salu('s_mul_i32', S(self.st0), S(self.sWv), '98304')
        e.valu('v_add3_u32', V(self.vW), V(self.vW), V(u), S(self.st0))
        e.salu('s_mul_i32', S(self.st0), S(self.sWv), '9')
        e.valu('v_lshrrev_b32', V(u), '4', V(ln))
        e.valu('v_add_u32', V(u), S(self.st0), V(u))
        e.valu('v_and_b32', V(u), '3', V(u))
        e.valu('v_lshlrev_b32', V(u), '1', V(u))
        e.valu('v_xor_b32', V(u), V(u), V(self.t2))
        e.valu('v_lshlrev_b32', V(u), '4', V(u))
        e.valu('v_mul_u32_u24', V(self.vX), '1280', V(t))
        e.salu('s_mul_i32', S(self.st0), S(self.sWv), '23040')
        e.valu('v_add3_u32', V(self.vX), V(self.vX), V(u), S(self.st0))
        e.valu('v_lshlrev_b32', V(t), '4', V(ln))
        e.valu('v_add_u32', V(self.aP), str(PX), V(t))
        e.salu('s_and_b32', S(self.st0), S(self.sS), '1')
        e.salu('s_lshl_b32', S(self.st0), S(self.st0), '3')
        e.salu('s_lshr_b32', S(self.st1), S(self.sS), '1')
        e.salu('s_lshl_b32', S(self.st1), S(self.st1), '10')
        e.salu('s_add_u32', S(self.st0), S(self.st0), S(self.st1))
        e.valu('v_add_u32', V(self.aPw), S(self.st0), V(self.aP))
        e.valu('v_and_b32', V(t), '15', V(ln))
        e.valu('v_mul_u32_u24', V(t), '48', V(t))
        e.valu('v_add_u32', V(self.aM), str(SMM), V(t))
        for f in self.dma_tile('W', 0) + self.dma_tile('W', 1) + self.dma_x_joined(0) + self.dma_x_joined(2):
            f()
        self.l2_prefetch()
        if os.environ.get('PFO', 'start') == 'start':
            self.fo()
        e.wait_vm0()
        e.barrier()
        self.rstamp()
        self.stamp()
        e.wait_vm0()
        save = (e.lines, e.hist, e.pos, e.lds, e.vm, self.vslot)
        e.lines, e.hist, e.lds, e.vm = [], [], [], []
        self.head()
        self.retag()
        inq = list(e.vm)
        e.lines, e.hist, e.pos, e.lds, e.vm, self.vslot = save
        e.vm = list(inq)
        e.flush_hazards()
        e.label('L_head_%d' % g)
        self.head()
        self.retag()
        assert [t for t, _ in e.vm] == [t for t, _ in inq], (e.vm, inq)
        e.salu('s_mov_b32', S(self.sBH), S(self.sBHn))
        e.salu('s_mov_b32', S(self.sHW), S(self.sHWn))
        e.salu('s_add_u32', S(self.sBHn), S(self.sBHn), '196608')
        e.salu('s_add_u32', S(self.sHWn), S(self.sHWn), '384')
        e.salu('s_add_u32', S(self.sOB), S(self.sOB), str(6 * 147456))
        e.salu('s_add_u32', S(self.sCnt), S(self.sCnt), '1')
        e.flush_hazards()
        e.salu('s_cmp_lt_u32', None, S(self.sCnt), '4')
        e.raw('    s_cbranch_scc1 L_head_%d' % g)
        self.rstamp()
        if os.environ.get('PFO') == 'end':
            self.fo()
        e.raw('    s_endpgm')


def srd(e, d, lo, hi, nbytes):
    e.salu('s_mov_b32', S(d), S(lo))
    e.salu('s_and_b32', S(d + 1), S(hi), '0xffff')
    e.salu('s_mov_b32', S(d + 2), str(nbytes))
    e.salu('s_mov_b32', S(d + 3), '0x00020000')


def gen_k1(dbg=False):
    e = Em()
    if NOMFMA:
        e.mfma = lambda *a: None
    if os.environ.get('NODMA'):
        e.dma = lambda *a, **k: None
    if os.environ.get('NOLDSR'):
        e.ds_read = lambda *a, **k: None
    k = K1
    e.raw('.p2align 8')
    e.raw('attn_kernel:')
    e.salu('s_cmp_ge_u32', None, 's2', '256')
    e.raw('    s_cbranch_scc1 L_k1_exit')
    e.raw('    s_load_dwordx8 s[48:55], s[0:1], 0')
    e.raw('    s_load_dwordx8 s[56:63], s[0:1], 40')
    e.raw('    s_load_dwordx2 s[64:65], s[0:1], 96')
    e.raw('    s_load_dwordx2 s[94:95], s[0:1], 32')
    e.raw('    s_load_dwordx2 s[96:97], s[0:1], 72')
    e.salu('s_and_b32', 's3', 's2', '7')
    e.salu('s_lshr_b32', 's4', 's2', '3')
    e.salu('s_lshr_b32', 's5', 's3', '2')
    e.salu('s_and_b32', 's6', 's3', '3')
    e.salu('s_lshr_b32', 's7', 's6', '1')
    e.salu('s_lshl_b32', 's7', 's7', '3')
    e.salu('s_lshr_b32', 's66', 's4', '2')
    e.salu('s_add_u32', 's7', 's7', 's66')
    e.salu('s_and_b32', 's66', 's6', '1')
    e.salu('s_lshl_b32', 's66', 's66', '2')
    e.salu('s_and_b32', 's67', 's4', '3')
    e.salu('s_add_u32', 's66', 's66', 's67')
    e.salu('s_lshl_b32', 's66', 's66', '2')
    e.raw('    s_waitcnt lgkmcnt(0)')
    e.salu('s_cmp_eq_u32', None, 's5', '0')
    for i in range(8):
        e.salu('s_cselect_b32', S(48 + i), S(48 + i), S(56 + i))
    e.salu('s_cselect_b32', 's94', 's94', 's96')
    e.salu('s_cselect_b32', 's95', 's95', 's97')
    srd(e, 88, 94, 95, 7864320)
    srd(e, k.sX, 48, 49, 2949120)
    srd(e, k.sK, 50, 51, 100663296)
    srd(e, k.sVv, 52, 53, 100663296)
    srd(e, k.sW, 54, 55, 7864320)
    srd(e, k.sO, 64, 65, 440008704 if dbg else 56623104)
    e.valu('v_lshrrev_b32', 'v1', '6', 'v0')
    e.rfl(S(k.sWv), 'v1')
    e.salu('s_and_b32', S(k.sS), S(k.sWv), '3')
    e.salu('s_mul_i32', S(k.sW3), S(k.sWv), '3072')
    e.salu('s_mul_i32', S(k.sW2), S(k.sWv), '2304')
    e.salu('s_lshl_b32', 's67', 's7', '5')
    e.salu('s_add_u32', 's67', 's67', 's66')
    e.salu('s_mul_i32', S(k.sBH), 's67', '196608')
    e.salu('s_add_u32', S(k.sBHn), S(k.sBH), '196608')
    e.salu('s_mul_i32', S(k.sHW), 's66', '384')
    e.salu('s_add_u32', S(k.sHWn), S(k.sHW), '384')
    e.salu('s_mul_i32', S(k.sXB), 's7', '184320')
    e.salu('s_mul_i32', 's67', 's5', '192')
    e.salu('s_mul_i32', 's68', 's66', '6')
    e.salu('s_add_u32', 's67', 's67', 's68')
    e.salu('s_mul_i32', 's67', 's67', '144')
    e.salu('s_mul_i32', 's68', 's7', '9')
    e.salu('s_add_u32', 's67', 's67', 's68')
    e.salu('s_lshl_b32', S(k.sOB), 's67', '10')
    e.salu('s_mov_b32', S(k.sCnt), '0')
    e.salu('s_mov_b32', S(k.sC), f32hex(SCALE_C))
    e.salu('s_lshr_b32', 's67', 's4', '2')
    e.salu('s_mul_i32', 's67', 's67', '80')
    e.salu('s_mul_i32', 's68', S(k.sWv), '10')
    e.salu('s_add_u32', 's67', 's67', 's68')
    e.salu('s_mul_i32', 's74', 's67', '12288')
    e.salu('s_and_b32', 's67', 's4', '3')
    e.salu('s_mul_i32', 's67', 's67', '360')
    e.salu('s_mul_i32', 's68', S(k.sWv), '45')
    e.salu('s_add_u32', 's67', 's67', 's68')
    e.salu('s_lshl_b32', 's67', 's67', '7')
    e.salu('s_add_u32', 's75', 's67', S(k.sXB))
    e.salu('s_lshl_b32', 's67', 's7', '3')
    e.salu('s_lshr_b32', 's68', 's66', '2')
    e.salu('s_add_u32', 's67', 's67', 's68')
    e.salu('s_mul_i32', 's67', 's67', '61440')
    e.salu('s_mul_i32', 's68', S(k.sWv), '7680')
    e.salu('s_add_u32', 's92', 's67', 's68')
    e.salu('s_mul_i32', 's67', S(k.sS), '3')
    e.salu('s_and_b32', 's68', S(k.sS), '1')
    e.salu('s_add_u32', S(k.sT[0]), 's67', 's68')
    e.salu('s_add_u32', S(k.sT[1]), S(k.sT[0]), '1')
    e.salu('s_add_u32', S(k.sT[2]), 's67', '2')
    e.salu('s_cmp_eq_u32', None, 's68', '1')
    e.salu('s_cselect_b32', S(k.sT[2]), 's67', S(k.sT[2]))
    e.salu('s_lshr_b32', 's67', S(k.sT[0]), '1')
    e.salu('s_mul_i32', S(k.sPo), 's67', '147456')
    e.salu('s_lshr_b32', 's67', S(k.sT[2]), '1')
    e.salu('s_mul_i32', S(k.sSo), 's67', '147456')
    e.salu('s_and_b32', 's67', S(k.sT[2]), '1')
    e.salu('s_lshl_b32', 's67', 's67', '3')
    e.salu('s_add_u32', S(k.sSo), S(k.sSo), 's67')
    if dbg:
        e.salu('s_lshl_b32', 's72', 's2', '3')
        e.salu('s_add_u32', 's72', 's72', S(k.sWv))
        e.salu('s_lshl_b32', 's72', 's72', '10')
        e.salu('s_add_u32', 's72', 's72', str(64 << 20))
    e.salu('s_cmp_ge_u32', None, S(k.sWv), '4')
    e.raw('    s_cbranch_scc1 L_grp1')
    e.flush_hazards()
    K1(e, 0, dbg).body()
    e.label('L_grp1')
    e.flush_hazards()
    e.lds, e.vm = [], []
    K1(e, 1, dbg).body()
    e.label('L_k1_exit')
    e.raw('    s_endpgm')
    return e.text()


def gen_k2():
    e = Em()
    if os.environ.get('K2NOMFMA'):
        e.mfma = lambda *a: None
    NR, NC = 6, 8
    if os.environ.get('K2NOW'):
        e.dma = lambda *a, **k: None
    if os.environ.get('K2NOO'):
        e.bload = lambda *a, **k: None
    e.raw('.p2align 8')
    e.raw('oproj_kernel:')
    e.salu('s_cmp_ge_u32', None, 's2', '240')
    e.raw('    s_cbranch_scc1 L_k2_exit')
    e.raw('    s_load_dwordx2 s[4:5], s[0:1], 32')
    e.raw('    s_load_dwordx2 s[6:7], s[0:1], 72')
    e.raw('    s_load_dwordx2 s[8:9], s[0:1], 80')
    e.raw('    s_load_dwordx2 s[10:11], s[0:1], 96')
    sWo, sOw, sOut = 12, 16, 20
    sWv, sBlk, sMt, sNs, sO0, sO1, sWoff, sCnt, sLb, sOo, st = 24, 25, 26, 27, 28, 29, 31, 32, 33, 34, 35
    e.salu('s_and_b32', 's3', 's2', '7')
    e.salu('s_lshr_b32', 's36', 's2', '3')
    e.salu('s_lshr_b32', S(sBlk), 's3', '2')
    e.salu('s_and_b32', 's3', 's3', '3')
    e.salu('s_mul_i32', 's3', 's3', '6')
    e.salu('s_mul_i32', 's37', 's36', '13108')
    e.salu('s_lshr_b32', 's37', 's37', '16')
    e.salu('s_add_u32', S(sMt), 's3', 's37')
    e.salu('s_mul_i32', 's37', 's37', '5')
    e.salu('s_sub_u32', S(sNs), 's36', 's37')
    e.raw('    s_waitcnt lgkmcnt(0)')
    e.salu('s_cmp_eq_u32', None, S(sBlk), '0')
    e.salu('s_cselect_b32', 's4', 's4', 's6')
    e.salu('s_cselect_b32', 's5', 's5', 's7')
    srd(e, sWo, 4, 5, 7864320)
    srd(e, sOw, 10, 11, 56623104)
    srd(e, sOut, 8, 9, 5898240)
    e.valu('v_lshrrev_b32', 'v1', '6', 'v0')
    e.rfl(S(sWv), 'v1')
    OF = lambda stg, r: stg * 24 + r * 4
    WF = lambda buf, nt: 96 + buf * 32 + nt * 4
    vWo = [160, 161]
    aT = [162 + i for i in range(8)]
    vOo, vL, t0, t1, t2, t3 = 170, 171, 172, 173, 174, 175
    acc = lambda nt, r: (nt * NR + r) * 4
    e.valu('v_and_b32', V(vL), '63', 'v0')
    e.valu('v_lshlrev_b32', V(vOo), '4', V(vL))
    e.valu('v_lshrrev_b32', V(t0), '4', V(vL))
    e.valu('v_and_b32', V(t1), '15', V(vL))
    for p in range(2):
        e.valu('v_add_u32', V(t2), str(4 * p), V(t0))
        e.valu('v_lshlrev_b32', V(t2), '1', V(t2))
        e.valu('v_xor_b32', V(t2), V(t2), V(t1))
        e.valu('v_lshlrev_b32', V(t2), '4', V(t2))
        e.valu('v_mul_u32_u24', V(t3), '1280', V(t0))
        e.valu('v_add_u32', V(vWo[p]), V(t2), V(t3))
    e.salu('s_lshl_b32', S(sLb), S(sWv), '15')
    e.valu('v_lshrrev_b32', V(t0), '2', V(vL))
    e.valu('v_and_b32', V(t1), '7', V(t0))
    e.valu('v_lshlrev_b32', V(t0), '8', V(t0))
    e.valu('v_and_b32', V(t2), '3', V(vL))
    e.valu('v_lshl_add_u32', V(t0), V(t2), '3', V(t0))
    e.valu('v_add_u32', V(t0), S(sLb), V(t0))
    for nt in range(NC):
        e.valu('v_xor_b32', V(t2), str(nt), V(t1))
        e.valu('v_lshl_add_u32', V(aT[nt]), V(t2), '5', V(t0))
    e.salu('s_mul_i32', S(st), S(sBlk), '192')
    e.salu('s_mul_i32', 's36', S(sWv), '48')
    e.salu('s_add_u32', S(st), S(st), 's36')
    e.salu('s_mul_i32', S(st), S(st), '144')
    e.salu('s_mul_i32', 's37', S(sMt), '6')
    e.salu('s_add_u32', S(st), S(st), 's37')
    e.salu('s_lshl_b32', S(sO0), S(st), '10')
    e.salu('s_add_u32', S(sO1), S(sO0), '4096')
    e.salu('s_mul_i32', S(sWoff), 's36', '40960')
    e.salu('s_lshl_b32', S(st), S(sNs), '8')
    e.salu('s_add_u32', S(sWoff), S(sWoff), S(st))
    e.salu('s_mul_i32', S(sOo), S(sMt), str(96 * 2560))
    e.salu('s_mul_i32', 's37', S(sBlk), '1280')
    e.salu('s_add_u32', S(sOo), S(sOo), 's37')
    e.salu('s_add_u32', S(sOo), S(sOo), S(st))
    e.salu('s_mov_b32', S(sCnt), '0')

    STG = lambda u, i: 192 + (u & 1) * 32 + i * 4
    aSt = 179

    def issue(u):
        for i in range(8):
            if os.environ.get('K2LIN'):
                if i:
                    e.salu('s_add_u32', S(st), S(sWoff), str(1024 * i))
                e.bload('buffer_load_dwordx4', A(STG(u, i), 4), V(vOo), S(sWo, 4), S(st if i else sWoff), tag=('w', u % 4))
                continue
            if i:
                e.salu('s_add_u32', S(st), S(sWoff), str(5120 * i))
            e.bload('buffer_load_dwordx4', A(STG(u, i), 4), V(vWo[i & 1]), S(sWo, 4), S(st if i else sWoff), tag=('w', u % 4))
        e.salu('s_add_u32', S(sWoff), S(sWoff), '40960')

    def issue_o(u):
        for r in range(NR):
            e.bload('buffer_load_dwordx4', V(OF(u % 4, r), 4), V(vOo), S(sOw, 4), S([sO0, sO1][r >> 2]), off=(r & 3) * 1024, tag=('o', u % 4))
        e.salu('s_add_u32', S(sO0), S(sO0), '147456')
        e.salu('s_add_u32', S(sO1), S(sO1), '147456')

    def stw(u):
        for i in range(8):
            e.ds_write('ds_write_b128', V(aSt), A(STG(u, i), 4), off=(u & 1) * 8192 + i * 1024)

    def ldw(u):
        for nt in range(NC):
            e.ds_read('ds_read_b64_tr_b16', V(WF(u & 1, nt), 2), V(aT[nt]), off=(u & 1) * 8192)
            e.ds_read('ds_read_b64_tr_b16', V(WF(u & 1, nt) + 2, 2), V(aT[nt]), off=(u & 1) * 8192 + 4096)

    e.valu('v_add_u32', V(aSt), S(sLb), V(vOo))
    K2DBG = os.environ.get('K2DBG')

    def kst(i):
        if not K2DBG:
            return
        e.raw('    s_memtime s[40:41]')
        e.raw('    s_waitcnt lgkmcnt(0)')
        e.lds = []
        e.valu('v_mov_b32', V(t3), 's40')
        e.salu('s_lshl_b32', 's42', 's2', '2')
        e.salu('s_add_u32', 's42', 's42', S(sWv))
        e.salu('s_lshl_b32', 's42', 's42', '5')
        e.salu('s_add_u32', 's42', 's42', str((70 << 20) + 4 * i))
        e.raw('    buffer_store_dword %s, off, s[44:47], s42' % V(t3))
        e.vm.append(('stamp', set()))
    if K2DBG:
        srd(e, 44, 10, 11, 440008704)
    kst(0)
    for a in range(NR * NC * 4):
        e.valu('v_accvgpr_write_b32', A(a), '0')
    issue_o(0)
    issue(0)
    issue_o(1)
    issue(1)
    issue_o(2)
    stw(0)
    ldw(0)

    def body():
        for u in range(4):
            issue(u + 2)
            issue_o(u + 3)
            n = 0
            for r in range(NR):
                for nt in range(NC):
                    e.mfma(A(acc(nt, r), 4), V(WF(u & 1, nt), 4), V(OF(u % 4, r), 4), A(acc(nt, r), 4))
                    n += 1
                    if n == 16:
                        stw(u + 1)
                    if n == 28:
                        ldw(u + 1)
    save = (e.lines, e.hist, e.pos, e.lds, e.vm)
    vm_in = list(e.vm)
    e.lines = []
    body()
    vm_out = list(e.vm)
    e.lines, e.hist, e.pos, e.lds, e.vm = save
    if not os.environ.get('K2NOMFMA'):
        assert [t for t, _ in vm_out] == [t for t, _ in vm_in], (vm_out, vm_in)
    kst(1)
    if K2DBG:
        e.vm = list(vm_in)
    e.flush_hazards()
    e.label('L_k2_loop')
    body()
    e.salu('s_add_u32', S(sCnt), S(sCnt), '1')
    e.salu('s_cmp_lt_u32', None, S(sCnt), '12')
    e.raw('    s_cbranch_scc1 L_k2_loop')
    e.flush_hazards()
    kst(2)
    e.wait_vm0()
    e.barrier()
    kst(3)
    tiles = [(nt, r) for nt in range(NC) for r in range(NR)]
    rounds = [tiles[:24], tiles[24:]]
    aR, aRw, vS = 176, 177, 178
    e.valu('v_lshlrev_b32', V(aR), '4', V(vL))
    e.salu('s_mul_i32', S(st), S(sWv), '24576')
    e.valu('v_add_u32', V(aRw), S(st), V(aR))
    e.valu('v_add_u32', V(t2), '49152', V(aR))
    e.valu('v_and_b32', V(t0), '15', V(vL))
    e.valu('v_mul_u32_u24', V(t0), '2560', V(t0))
    e.valu('v_lshrrev_b32', V(t1), '4', V(vL))
    e.valu('v_lshl_add_u32', V(vS), V(t1), '3', V(t0))
    for ri, rd in enumerate(rounds):
        for ti, (nt, r) in enumerate(rd):
            e.ds_write('ds_write_b128', V(aRw), A(acc(nt, r), 4), off=ti * 1024)
        e.barrier()
        for w in range(4):
            lab = 'L_k2_r%d_w%d' % (ri, w)
            e.salu('s_cmp_lg_u32', None, S(sWv), str(w))
            e.raw('    s_cbranch_scc1 %s' % lab)
            mine = [(ti, t) for ti, t in enumerate(rd) if ti % 4 == w]
            for n, (ti, (nt, r)) in enumerate(mine):
                b = n * 16
                for p in range(4):
                    ad, of = (aR, p * 24576 + ti * 1024) if p < 2 else (t2, (p - 2) * 24576 + ti * 1024)
                    e.ds_read('ds_read_b128', V(b + p * 4, 4), V(ad), off=of)
            for n, (ti, (nt, r)) in enumerate(mine):
                b = n * 16
                for i in range(4):
                    e.valu('v_add_f32', V(b + i), V(b + i), V(b + 4 + i))
                    e.valu('v_add_f32', V(b + 8 + i), V(b + 8 + i), V(b + 12 + i))
                for i in range(4):
                    e.valu('v_add_f32', V(b + i), V(b + i), V(b + 8 + i))
                e.valu('v_cvt_pk_bf16_f32', V(b), V(b), V(b + 1))
                e.valu('v_cvt_pk_bf16_f32', V(b + 1), V(b + 2), V(b + 3))
                e.salu('s_add_u32', S(st), S(sOo), str(r * 40960 + nt * 32))
                e.bstore('buffer_store_dwordx2', V(b, 2), V(vS), S(sOut, 4), S(st), tag='out')
            e.wait_lds()
            e.label(lab)
            e.flush_hazards()
        if ri == 0:
            e.barrier()
    kst(4)
    e.label('L_k2_exit')
    e.raw('    s_endpgm')
    return e.text()


HEADER = open('cdna_kernels/%s.s.ref' % NAME).read().split('; Override launch')[0]


def kd(name, vgpr, acc, sgpr=102):
    return '''.amdhsa_kernel %s
  .amdhsa_next_free_vgpr %d
  .amdhsa_next_free_sgpr %d
  .amdhsa_accum_offset %d
  .amdhsa_group_segment_fixed_size 0
  .amdhsa_kernarg_size 104
  .amdhsa_user_sgpr_count 2
  .amdhsa_user_sgpr_kernarg_segment_ptr 1
  .amdhsa_system_sgpr_workgroup_id_x 1
.end_amdhsa_kernel
''' % (name, vgpr, sgpr, acc)


def main():
    out = HEADER
    out += '; @launch kernel=attn_kernel grid=(256,1,1) block=(512,1,1) lds=163840\n'
    out += '; @launch kernel=oproj_kernel grid=(240,1,1) block=(256,1,1) lds=131072\n'
    out += '.amdgcn_target "amdgcn-amd-amdhsa--gfx950"\n.text\n'
    out += '.globl attn_kernel\n.type attn_kernel,@function\n.globl oproj_kernel\n.type oproj_kernel,@function\n'
    out += gen_k1('dbg' in sys.argv)
    out += gen_k2()
    out += '.section .rodata,"a"\n.p2align 6\n'
    out += kd('attn_kernel', 256, 256)
    out += '.p2align 6\n'
    out += kd('oproj_kernel', 512, 256)
    dst = sys.argv[1] if len(sys.argv) > 1 else 'cdna_kernels/%s.s' % NAME
    open(dst, 'w').write(out)
    print('wrote', dst, len(out), 'bytes')


if __name__ == '__main__':
    main()
```

```python
import math, sys, os
NOMFMA = os.environ.get('NOMFMA')
K0SEG = int(os.environ.get('K0SEG', '-1'))
PFSEG = int(os.environ.get('PFSEG', '6'))
STAG = int(os.environ.get('STAG', '0'))
K1SEG = int(os.environ.get('K1SEG', '8'))
NOMID = os.environ.get('NOMID')
USE_NT = not os.environ.get('NONT')
USE_PF = not os.environ.get('NOPF')
NOSM = os.environ.get('NOSM')
from em import Em, V, A, S, f32hex

NAME = 'concat_heads__gqa_block_cached__mha_block_cached__near_ridge'

TILE = 24576
VW = 0
KR = 73728
PX = 122880
PXB = 18432
SML = 159744
SMM = SML + 2304
LDS1 = 163840
XBUF = [PX, PX + PXB, KR + TILE]
XBASE = KR + TILE

SCALE_C = (192 ** -0.5) * math.log2(math.e)


def weave(e, main, fills):
    nm = sum(1 for k, _ in main if k == 'm')
    after = {}
    for lo, hi, fl in fills:
        if not fl:
            continue
        hi = min(hi, nm - 1)
        lo = min(lo, hi)
        if nm == 0:
            after.setdefault(-1, []).extend(fl)
            continue
        span = hi - lo + 1
        for i, f in enumerate(fl):
            after.setdefault(lo + (i * span) // len(fl), []).append(f)
    for f in after.get(-1, []):
        f()
    i = 0
    for k, fn in main:
        fn()
        if k == 'm':
            for f in after.get(i, []):
                f()
            i += 1


def dpos(g, n, nm, kind=0):
    if g == 0 or not (STAG >> kind) & 1:
        return (0, n)
    lo = max(0, nm - 3 - n)
    return (lo, lo + n)


class K1:
    sK, sVv, sW, sX, sO = 8, 12, 16, 20, 24
    sWv, sS, sW3, sW2 = 28, 29, 30, 31
    sBH, sHW, sXB, sOB, sCnt, sC = 32, 33, 34, 35, 36, 37
    sT = [38, 39, 40]
    sBHn, sHWn = 41, 42
    sPo, sSo = 43, 44
    st0, st1, st2 = 45, 46, 47

    def __init__(self, e, grp, dbg=None):
        self.e = e
        self.g = grp
        self.dbg = dbg
        if grp == 0:
            self.qts = [0, 1, 2, 3, 4]
            self.pts = [0, 1, 2, 3]
            self.rt0 = 0
        else:
            self.qts = [5, 6, 7, 8]
            self.pts = [4, 5, 6, 7, 8]
            self.rt0 = 4
        nq, np_ = len(self.qts), len(self.pts)
        self.nq, self.np = nq, np_
        self.QF = 0
        self.OA = nq * 24
        self.SS = self.OA + np_ * 12
        assert self.SS + nq * 4 <= 188
        r = 188
        self.KF = [r, r + 4]; r += 8
        self.VF = [r, r + 4, r + 8]; r += 12
        self.PF = [r, r + 4, r + 8]; r += 12
        self.mq = [r, r + 4]; r += 8
        self.m1 = [r, r + 1]; r += 2
        self.l = r; r += 5
        self.al = r; r += 5
        self.vLane = r; r += 1
        self.vKV = r; r += 1
        self.vW = r; r += 1
        self.vX = r; r += 1
        self.aK = [r, r + 1]; r += 2
        self.aV = [r, r + 1, r + 2]; r += 3
        self.aP = r; r += 1
        self.aPw = r; r += 1
        self.aM = r; r += 1
        self.t0 = r; r += 1
        self.t1 = r; r += 1
        self.t2 = r; r += 1
        self.t3 = r; r += 1
        assert r <= 256, r
        self.aX = self.aK
        self.aW = self.aV
        self.vslot = None

    def qf(self, iq, ks):
        return self.QF + iq * 24 + ks * 4

    def acc(self, iq, dt):
        return self.qf(iq, 3 + dt)

    def oa(self, ip, dt):
        return self.OA + ip * 12 + dt * 4

    def ss(self, iq):
        return self.SS + iq * 4

    def mreg(self, st, idx):
        return self.m1[st] if idx == 0 else self.mq[st] + idx - 1

    def dma_tile(self, kind, idx, nxt=False):
        e = self.e
        fns = []
        tag = (kind, idx, nxt)
        if kind == 'W':
            slot = VW + (idx % 3) * TILE
            base, add, srd, voff = (self.sHWn if nxt else self.sHW), idx * 786432, self.sW, self.vW
        elif kind == 'V':
            slot = VW + ((10 + idx) % 3) * TILE
            base, add, srd, voff = (self.sBHn if nxt else self.sBH), idx * TILE, self.sVv, self.vKV
        else:
            slot = KR + (idx & 1) * TILE
            base, add, srd, voff = (self.sBHn if nxt else self.sBH), idx * TILE, self.sK, self.vKV
        for i in range(3):
            def f(i=i):
                if i == 0:
                    e.salu('s_add_u32', S(self.st0), S(base), str(add))
                e.salu('s_add_u32', 'm0', S(self.sW3), str(slot + i * 1024 - i * 128))
                e.dma(V(voff), S(srd, 4), S(self.st0), off=i * 128, tag=tag, nt=(kind != 'W' and USE_NT))
            fns.append(f)
        return fns

    def xbuf(self, c):
        return XBUF[c % 3] if c <= 5 else XBUF[c & 1]

    def dma_x(self, c):
        e = self.e
        fns = []
        tag = ('x', c, False)
        for n in range(3):
            def f(n=n):
                e.salu('s_add_u32', S(self.st1), S(self.sXB), str(c * 128 + 9216 * n))
                if n == 0:
                    e.salu('s_add_u32', 'm0', S(self.sW2), str(self.xbuf(c)))
                if n == 2:
                    e.salu('s_mov_b64', 'exec', '0xffff')
                e.dma(V(self.vX), S(self.sX, 4), S(self.st1), off=n * 1024, tag=tag)
                if n == 2:
                    e.salu('s_mov_b64', 'exec', '-1')
            fns.append(f)
        return fns

    def dma_x_joined(self, c):
        fl = self.dma_x(c)

        def f():
            for x in fl:
                x()
        return [f]

    def l2_prefetch(self):
        e = self.e

        def fw():
            e.valu('v_min_u32', V(self.t2), '29', V(self.vLane))
            e.valu('v_mul_u32_u24', V(self.t3), '43', V(self.t2))
            e.valu('v_lshrrev_b32', V(self.t3), '7', V(self.t3))
            e.valu('v_mul_u32_u24', V(self.t1), '3', V(self.t3))
            e.valu('v_sub_u32', V(self.t2), V(self.t2), V(self.t1))
            e.valu('v_lshlrev_b32', V(self.t2), '7', V(self.t2))
            e.valu('v_mul_u32_u24', V(self.t3), '12288', V(self.t3))
            e.valu('v_add_u32', V(self.t2), V(self.t2), V(self.t3))
            e.salu('s_add_u32', S(self.st2), 's74', S(self.sHWn))
            e.bload('buffer_load_dword', V(self.t3), V(self.t2), S(self.sW, 4), S(self.st2), tag='pf')

        def fx():
            e.valu('v_min_u32', V(self.t2), '44', V(self.vLane))
            e.valu('v_lshlrev_b32', V(self.t2), '7', V(self.t2))
            e.raw('    buffer_load_dword %s, %s, s[%d:%d], s75 offen' % (V(self.t3), V(self.t2), self.sX, self.sX + 3))
            e.vm.append(('pf', set()))
            e.pos += 1
        def fo():
            e.valu('v_min_u32', V(self.t2), '59', V(self.vLane))
            e.valu('v_lshlrev_b32', V(self.t2), '7', V(self.t2))
            e.raw('    buffer_load_dword %s, %s, s[88:91], s92 offen' % (V(self.t3), V(self.t2)))
            e.vm.append(('pf', set()))
            e.pos += 1
        self.fo = fo
        return [fw, fx]

    def lane_fields(self, q, g, r=None, c=None):
        e = self.e
        e.valu('v_and_b32', V(q), '15', V(self.vLane))
        e.valu('v_lshrrev_b32', V(g), '4', V(self.vLane))
        if r is not None:
            e.valu('v_bfe_u32', V(r), V(self.vLane), '2', '2')
            e.valu('v_and_b32', V(c), '3', V(self.vLane))

    def setup_tr_addr(self, dst, kindW):
        e = self.e
        q, g, r, c, sw, t, u, base = [self.KF[0] + i for i in range(8)]
        self.lane_fields(q, g, r, c)
        if kindW:
            e.valu('v_lshrrev_b32', V(sw), '1', V(r))
            e.valu('v_and_b32', V(t), '1', V(g))
            e.valu('v_lshl_add_u32', V(sw), V(t), '1', V(sw))
            e.valu('v_lshlrev_b32', V(sw), '1', V(sw))
            e.valu('v_mul_u32_u24', V(base), '3072', V(g))
            e.valu('v_lshl_add_u32', V(base), V(r), '7', V(base))
        else:
            e.valu('v_lshrrev_b32', V(sw), '1', V(r))
            e.valu('v_lshl_add_u32', V(sw), V(g), '1', V(sw))
            e.valu('v_and_b32', V(sw), '3', V(sw))
            e.valu('v_lshlrev_b32', V(sw), '1', V(sw))
            e.valu('v_lshrrev_b32', V(t), '1', V(g))
            e.valu('v_mul_u32_u24', V(base), '3072', V(t))
            e.valu('v_and_b32', V(t), '1', V(g))
            e.valu('v_lshl_add_u32', V(t), V(t), '2', V(r))
            e.valu('v_lshl_add_u32', V(base), V(t), '7', V(base))
        e.valu('v_and_b32', V(t), '1', V(c))
        e.valu('v_lshl_add_u32', V(base), V(t), '3', V(base))
        e.valu('v_lshrrev_b32', V(c), '1', V(c))
        for dt in range(3):
            e.salu('s_lshl_b32', S(self.st0), S(self.sT[dt]), '1')
            e.valu('v_add_u32', V(t), S(self.st0), V(c))
            e.valu('v_lshrrev_b32', V(u), '3', V(t))
            e.valu('v_and_b32', V(t), '7', V(t))
            e.valu('v_xor_b32', V(t), V(t), V(sw))
            e.valu('v_lshl_add_u32', V(t), V(t), '4', V(base))
            e.valu('v_lshl_add_u32', V(dst[dt]), V(u), '10', V(t))

    def setup_qproj_addr(self):
        e = self.e
        self.setup_tr_addr(self.aW, True)
        q, g, sw, t = [self.KF[0] + i for i in range(4)]
        self.lane_fields(q, g)
        e.valu('v_and_b32', V(sw), '6', V(q))
        e.valu('v_xor_b32', V(t), V(g), V(sw))
        e.valu('v_lshlrev_b32', V(t), '4', V(t))
        e.valu('v_lshl_add_u32', V(t), V(q), '7', V(t))
        e.valu('v_add_u32', V(self.aX[0]), str(XBASE), V(t))
        e.valu('v_xor_b32', V(self.aX[1]), '64', V(self.aX[0]))

    def setup_attn_addr(self):
        e = self.e
        self.setup_tr_addr(self.aV, False)
        self.vslot = 0
        q, g, sw, t, u = [self.KF[0] + i for i in range(5)]
        self.lane_fields(q, g)
        e.valu('v_and_b32', V(sw), '6', V(q))
        e.valu('v_xor_b32', V(t), V(g), V(sw))
        e.valu('v_lshlrev_b32', V(t), '4', V(t))
        e.valu('v_and_b32', V(u), '7', V(q))
        e.valu('v_lshl_add_u32', V(t), V(u), '7', V(t))
        e.valu('v_lshrrev_b32', V(u), '3', V(q))
        e.valu('v_mul_u32_u24', V(u), '3072', V(u))
        e.salu('s_mul_i32', S(self.st0), S(self.sS), '6144')
        e.salu('s_add_u32', S(self.st0), S(self.st0), str(KR))
        e.valu('v_add3_u32', V(self.aK[0]), V(t), V(u), S(self.st0))
        e.valu('v_xor_b32', V(self.aK[1]), '64', V(self.aK[0]))

    def set_vslot(self, slot):
        e = self.e
        d = slot - self.vslot
        if d:
            for dt in range(3):
                if d > 0:
                    e.valu('v_add_u32', V(self.aV[dt]), str(d), V(self.aV[dt]))
                else:
                    e.valu('v_subrev_u32', V(self.aV[dt]), str(-d), V(self.aV[dt]))
            self.vslot = slot

    def seg_q(self, c):
        e = self.e
        nq = self.nq
        e.comment('---- Q seg %d' % c)
        if c == 0:
            self.setup_qproj_addr()
            t = self.KF[0]
            e.valu('v_mov_b32', V(t), '0xff800000')
            e.valu('v_mov_b32', V(t + 1), '0xff800000')
            e.valu('v_lshlrev_b32', V(t + 2), '3', V(self.vLane))
            e.valu('v_add_u32', V(t + 2), str(SMM), V(t + 2))
            for k in range(3):
                e.ds_write('ds_write_b64', V(t + 2), V(t, 2), off=512 * k)
        slot = VW + (c % 3) * TILE
        xo = self.xbuf(c) - XBASE
        WF = [self.OA, self.OA + 12]
        XF = [self.OA + 24, self.OA + 28, self.OA + 32]
        dm = []
        if c + 2 <= 9:
            dm += self.dma_tile('W', c + 2)
        xs = {0: 1, 1: 3, 2: 4, 3: 5, 4: 6, 5: 7, 7: 8, 8: 9}
        if c in xs:
            dm += self.dma_x_joined(xs[c])
        if c == K0SEG:
            dm += self.dma_tile('K', 0)
        if c == K1SEG:
            dm += self.dma_tile('K', 1)
        if c + 2 > 9:
            dm += self.dma_tile('V', c - 8)
        main = []

        def ldw(ks, dt):
            def f():
                e.ds_read('ds_read_b64_tr_b16', V(WF[ks] + dt * 4, 2), V(self.aW[dt]), off=slot + ks * 12288)
                e.ds_read('ds_read_b64_tr_b16', V(WF[ks] + dt * 4 + 2, 2), V(self.aW[dt]), off=slot + ks * 12288 + 512)
            return f

        def ldx(idx):
            ks, iq = divmod(idx, nq)

            def f():
                e.ds_read('ds_read_b128', V(XF[idx % 3], 4), V(self.aX[ks]), off=xo + self.qts[iq] * 2048)
            return f
        for dt in range(3):
            main.append(('o', ldw(0, dt)))
        for idx in range(3):
            main.append(('o', ldx(idx)))
        for dt in range(3):
            main.append(('o', ldw(1, dt)))
        for idx in range(2 * nq):
            ks, iq = divmod(idx, nq)
            for dt in range(3):
                def f(ks=ks, iq=iq, dt=dt, idx=idx):
                    a = self.acc(iq, dt)
                    e.mfma(V(a, 4), V(WF[ks] + dt * 4, 4), V(XF[idx % 3], 4), '0' if (c == 0 and ks == 0) else V(a, 4))
                main.append(('m', f))
            if idx + 3 < 2 * nq:
                main.append(('o', ldx(idx + 3)))
        weave(e, main, [dpos(self.g, len(dm), 6 * nq, 0) + (dm,)])
        if c < 9:
            e.need([('W', c + 1, False), ('x', c + 1, False)])
            e.barrier()
            self.stamp()

    def exchange(self):
        e = self.e
        nq = self.nq
        for iq in range(nq):
            for dt in range(3):
                a = self.acc(iq, dt)
                e.valu('v_cvt_pk_bf16_f32', V(a), V(a), V(a + 1))
                e.valu('v_cvt_pk_bf16_f32', V(a + 1), V(a + 2), V(a + 3))
        q, g, base = self.KF[0], self.KF[0] + 1, self.KF[0] + 2
        aQw = [self.KF[0] + 3, self.KF[0] + 4, self.KF[0] + 5]
        aQr = self.KF[0] + 6
        self.lane_fields(q, g)
        e.valu('v_mul_u32_u24', V(base), '208', V(q))
        e.valu('v_add_u32', V(base), str(PX), V(base))
        e.valu('v_lshl_add_u32', V(aQr), V(g), '4', V(base))
        e.valu('v_lshl_add_u32', V(base), V(g), '3', V(base))
        for dt in range(3):
            e.salu('s_sub_u32', S(self.st0), S(self.sT[dt]), '6')
            e.salu('s_cmp_ge_u32', None, S(self.sT[dt]), '6')
            e.salu('s_cselect_b32', S(self.st0), S(self.st0), S(self.sT[dt]))
            e.salu('s_lshl_b32', S(self.st0), S(self.st0), '5')
            e.valu('v_add_u32', V(aQw[dt]), S(self.st0), V(base))

        def wr_block(lab, ge):
            e.salu('s_cmp_ge_u32', None, S(self.sS), '2')
            e.raw('    s_cbranch_scc%d %s' % (0 if ge else 1, lab))
            for iq in range(nq):
                for dt in range(3):
                    e.ds_write('ds_write_b64', V(aQw[dt]), V(self.acc(iq, dt), 2), off=self.qts[iq] * 3328)
            e.wait_lds()
            e.label(lab)
            e.flush_hazards()
        e.barrier()
        for f in self.dma_tile('V', 2):
            f()
        wr_block('L_exA_%d' % self.g, False)
        e.barrier()
        self.stamp()
        for iq in range(nq):
            for ks in range(3):
                e.ds_read('ds_read_b128', V(self.qf(iq, ks), 4), V(aQr), off=self.qts[iq] * 3328 + ks * 64)
        e.barrier()
        self.stamp()
        wr_block('L_exB_%d' % self.g, True)
        e.need([('K', 0, False)])
        e.barrier()
        self.stamp()
        for iq in range(nq):
            for ks in range(3):
                e.ds_read('ds_read_b128', V(self.qf(iq, 3 + ks), 4), V(aQr), off=self.qts[iq] * 3328 + ks * 64)
        self.setup_attn_addr()
        for idx in range(5):
            e.valu('v_mov_b32', V(self.mreg(1, idx)), '0xff800000')
            e.valu('v_mov_b32', V(self.l + idx), '0')

    def seg_a(self, j):
        e = self.e
        nq, np_ = self.nq, self.np
        doB = 0 <= j <= 7
        doC = 1 <= j <= 8
        doA = -1 <= j <= 6
        e.comment('---- attn seg %d' % j)
        dm = []
        dm2 = []
        if 0 <= j <= 5:
            dm += self.dma_tile('K', j + 2)
        if NOMID:
            if 2 <= j <= 6:
                dm += self.dma_tile('V', j + 1)
            if USE_PF and j == PFSEG + 1:
                dm += self.l2_prefetch()
            if j == 7:
                dm += self.dma_tile('W', 0, True)
            if j == 8:
                dm += self.dma_tile('W', 1, True)
        else:
            if 1 <= j <= 5:
                dm2 += self.dma_tile('V', j + 2)
            if USE_PF and j == PFSEG:
                dm2 += self.l2_prefetch()
            if j == 6:
                dm2 += self.dma_tile('W', 0, True)
            if j == 7:
                dm2 += self.dma_tile('W', 1, True)
        if j == 7 and K0SEG < 0:
            dm += self.dma_tile('K', 0, True)
        if j == 8:
            dm += self.dma_x_joined(0)
            dm += self.dma_x_joined(2)
        mid = 1 <= j <= 7 and not NOMID
        new, old = (j & 1), ((j + 1) & 1)
        nX = (nq + 1) // 2 if (doA and doB) else nq
        sM = 76
        fS, fBx, fBy = [], [], []
        if doB:
            mo = (j & 1) * 768
            e.ds_read('ds_read_b32', V(self.m1[new]), V(self.aM), off=mo + (3 + self.rt0) * 4)
            e.ds_read('ds_read_b128', V(self.mq[new], 4), V(self.aM), off=mo + (4 + self.rt0) * 4)
            R5 = range(5)
            for idx in R5:
                fS.append(lambda idx=idx: e.valu('v_mul_f32', V(self.mreg(new, idx)), S(self.sC), V(self.mreg(new, idx))))
            for idx in R5:
                fS.append(lambda idx=idx: e.valu('v_sub_f32', V(self.al + idx), V(self.mreg(new, idx)), V(self.mreg(old, idx))))
            for idx in R5:
                fS.append(lambda idx=idx: e.valu('v_cmp_lt_f32', S(sM + 2 + 2 * idx, 2), '4.0', V(self.al + idx)))
            for idx in R5:
                fS.append(lambda idx=idx: e.valu('v_cndmask_b32', V(self.mreg(new, idx)), V(self.mreg(old, idx)), V(self.mreg(new, idx)), S(sM + 2 + 2 * idx, 2)))

            def fbr():
                e.salu('s_or_b64', S(sM, 2), S(sM + 2, 2), S(sM + 4, 2))
                e.salu('s_or_b64', S(sM + 6, 2), S(sM + 6, 2), S(sM + 8, 2))
                e.salu('s_or_b64', S(sM, 2), S(sM, 2), S(sM + 10, 2))
                e.salu('s_or_b64', S(sM, 2), S(sM, 2), S(sM + 6, 2))
                lab = 'L_nl_%d_%d' % (self.g, j)
                e.raw('    s_cbranch_scc0 %s' % lab)
                e.cond_begin()
                for idx in R5:
                    e.valu('v_sub_f32', V(self.al + idx), V(self.mreg(old, idx)), V(self.mreg(new, idx)))
                for idx in R5:
                    e.valu('v_exp_f32', V(self.al + idx), V(self.al + idx))
                for iq in range(nq):
                    idx = self.qts[iq] - self.rt0
                    e.valu('v_mul_f32', V(self.l + idx), V(self.al + idx), V(self.l + idx))
                e.cond_end(lab)
            fS.append(fbr)

            def b_ops(tiles):
                fl = []
                for iq in tiles:
                    idx = self.qts[iq] - self.rt0
                    s0 = self.ss(iq)
                    for i in range(4):
                        fl.append(lambda s0=s0, i=i, idx=idx: e.valu('v_fma_f32', V(s0 + i), V(s0 + i), S(self.sC), '-' + V(self.mreg(new, idx))))
                for iq in tiles:
                    s0 = self.ss(iq)
                    for i in range(4):
                        fl.append(lambda s0=s0, i=i: e.valu('v_exp_f32', V(s0 + i), V(s0 + i)))
                for iq in tiles:
                    idx = self.qts[iq] - self.rt0
                    s0 = self.ss(iq)
                    lr = self.l + idx
                    fl.append(lambda s0=s0, lr=lr: e.valu('v_add_f32', V(lr), V(lr), V(s0)))
                    fl.append(lambda s0=s0: e.valu('v_add_f32', V(self.t0), V(s0 + 1), V(s0 + 2)))
                    fl.append(lambda s0=s0, lr=lr: e.valu('v_add_f32', V(lr), V(lr), V(s0 + 3)))
                    fl.append(lambda s0=s0: e.valu('v_cvt_pk_bf16_f32', V(s0), V(s0), V(s0 + 1)))
                    fl.append(lambda lr=lr: e.valu('v_add_f32', V(lr), V(lr), V(self.t0)))
                    fl.append(lambda s0=s0: e.valu('v_cvt_pk_bf16_f32', V(s0 + 1), V(s0 + 2), V(s0 + 3)))
                    fl.append(lambda s0=s0, iq=iq: e.ds_write('ds_write_b64', V(self.aPw), V(s0, 2), off=(j & 1) * PXB + self.qts[iq] * 2048))
                return fl
            fBx = b_ops(range(nX))
            fBy = b_ops(range(nX, nq))
        if NOSM:
            fS, fBx, fBy = [], [], []
        fB = fS + fBx
        mainC = []
        kslot = ((j + 1) & 1) * TILE
        passes = [list(range(nX)), list(range(nX, nq))] if nX < nq else [list(range(nq))]
        kseq = [(p, ks) for p in range(len(passes)) for ks in range(6)]
        KBUF = [self.KF[0], self.KF[1], self.PF[0], self.PF[1], self.PF[2]]

        def ldk(n):
            p, ks = kseq[n]

            def f():
                e.ds_read('ds_read_b128', V(KBUF[n % 5], 4), V(self.aK[ks & 1]), off=kslot + (ks >> 1) * 1024)
            return f
        if doC:
            self.set_vslot(VW + ((10 + j - 1) % 3) * TILE)
            pbuf = ((j - 1) & 1) * PXB

            def ldv(k, dt):
                def f():
                    e.ds_read('ds_read_b64_tr_b16', V(self.VF[dt], 2), V(self.aV[dt]), off=(4 * k) * 3072)
                    e.ds_read('ds_read_b64_tr_b16', V(self.VF[dt] + 2, 2), V(self.aV[dt]), off=(4 * k + 2) * 3072)
                return f

            def ldp(idx):
                k, ip = divmod(idx, np_)

                def f():
                    e.ds_read('ds_read_b128', V(self.PF[idx % 3], 4), V(self.aP), off=pbuf + (self.pts[ip] * 2 + k) * 1024)
                return f
            for dt in range(3):
                mainC.append(('o', ldv(0, dt)))
            for idx in range(3):
                mainC.append(('o', ldp(idx)))
            for idx in range(2 * np_):
                k, ip = divmod(idx, np_)
                for dt in range(3):
                    def f(k=k, ip=ip, dt=dt, idx=idx):
                        o = self.oa(ip, dt)
                        e.mfma(V(o, 4), V(self.VF[dt], 4), V(self.PF[idx % 3], 4), '0' if (j == 1 and k == 0) else V(o, 4))
                    mainC.append(('m', f))
                    if k == 0 and ip == np_ - 1:
                        mainC.append(('o', ldv(1, dt)))
                if idx + 3 < 2 * np_:
                    mainC.append(('o', ldp(idx + 3)))
            weave(e, mainC, [(0, 6 * np_ - 2, fB), dpos(self.g, len(dm), 6 * np_, 1) + (dm,)])
            dm = []
        else:
            if doA:
                ldk(0)()
                ldk(1)()
            for f in fB:
                f()
        if j == 7:
            self.l_exchange()
        if mid:
            if doA:
                e.need([('K', j + 1, False)])
            e.barrier()
            self.stamp()
            if doA:
                ldk(0)()
                ldk(1)()
        elif doC and doA:
            ldk(0)()
            ldk(1)()
        dm += dm2
        if doA:
            for n in range(2, 5):
                ldk(n)()
        if doB and j >= 1 and not NOSM:
            lab = 'L_nr_%d_%d' % (self.g, j)
            e.salu('s_cmp_eq_u64', None, S(sM, 2), '0')
            e.raw('    s_cbranch_scc1 %s' % lab)
            e.cond_begin()
            for ip in range(np_):
                idx = self.pts[ip] - self.rt0
                for dt in range(3):
                    for i in range(4):
                        o = self.oa(ip, dt) + i
                        e.valu('v_mul_f32', V(o), V(self.al + idx), V(o))
            e.cond_end(lab)
        if doA:
            mo = ((j + 1) & 1) * 768

            def mx(iq):
                def f():
                    s0 = self.ss(iq)
                    t = self.t2 if iq & 1 else self.t1
                    e.valu('v_max3_f32', V(t), V(s0), V(s0 + 1), V(s0 + 2))
                    e.valu('v_max_f32', V(t), V(t), V(s0 + 3))
                    e.ds_write(os.environ.get('MAXOP', 'ds_max_f32'), V(self.aM), V(t), off=mo + (3 + self.qts[iq]) * 4)
                return f
            mainA = []
            for n, (p, ks) in enumerate(kseq):
                for iq in passes[p]:
                    def f(n=n, ks=ks, iq=iq):
                        s0 = self.ss(iq)
                        e.mfma(V(s0, 4), V(KBUF[n % 5], 4), V(self.qf(iq, ks), 4), '0' if ks == 0 else V(s0, 4))
                    mainA.append(('m', f))
                if n + 5 < len(kseq):
                    mainA.append(('o', ldk(n + 5)))
            nm = 6 * nq
            fills = [dpos(self.g, len(dm), nm, 2) + (dm,)]
            if len(passes) == 2:
                fills.append((0, 6 * nX - 2, fBy))
                fills.append((6 * nX + 3, nm - 1, [mx(iq) for iq in passes[0]]))
            weave(e, mainA, fills)
            dm = []
            for iq in passes[-1]:
                mx(iq)()
        else:
            for f in dm:
                f()
        if j == 8:
            self.epilogue()
        nd = []
        if j + 1 <= (6 if NOMID else 0):
            nd.append(('K', j + 2, False))
        if 1 <= j + 1 <= 8:
            nd.append(('V', j, False))
        if j == 8:
            nd = [('W', 0, True), ('x', 0, False)]
        e.need(nd)
        e.barrier()
        self.stamp()

    def l_exchange(self):
        e = self.e
        idxs = [qt - self.rt0 for qt in self.qts]
        q, g, ad = self.QF, self.QF + 1, self.QF + 2
        self.lane_fields(q, g)
        pack = idxs[-4:]
        a, b, c, d = [self.l + i for i in pack]
        e.perm('v_permlane16_swap_b32', V(a), V(b))
        e.perm('v_permlane16_swap_b32', V(c), V(d))
        e.valu('v_add_f32', V(a), V(a), V(b))
        e.valu('v_add_f32', V(c), V(c), V(d))
        e.perm('v_permlane32_swap_b32', V(a), V(c))
        e.valu('v_add_f32', V(a), V(a), V(c))
        rtp = pack[0] + self.rt0
        e.salu('s_lshl_b32', S(self.st0), S(self.sS), '2')
        e.salu('s_add_u32', S(self.st0), S(self.st0), str(SML))
        e.valu('v_lshlrev_b32', V(ad), '4', V(q))
        e.valu('v_add_u32', V(ad), S(self.st0), V(ad))
        e.valu('v_lshl_add_u32', V(ad + 1), V(g), '8', V(ad))
        e.ds_write('ds_write_b32', V(ad + 1), V(a), off=rtp * 256)
        if len(idxs) == 5:
            x = self.l + idxs[0]
            y = self.QF + 5
            e.valu('v_mov_b32', V(y), V(x))
            e.perm('v_permlane16_swap_b32', V(x), V(y))
            e.valu('v_add_f32', V(x), V(x), V(y))
            e.valu('v_mov_b32', V(y), V(x))
            e.perm('v_permlane32_swap_b32', V(x), V(y))
            e.valu('v_add_f32', V(x), V(x), V(y))
            e.ds_write('ds_write_b32', V(ad), V(x), off=(idxs[0] + self.rt0) * 256)

    def epilogue(self):
        e = self.e
        np_ = self.np
        q, ad, vo = self.QF, self.QF + 1, self.QF + 2
        e.valu('v_and_b32', V(q), '15', V(self.vLane))
        e.valu('v_lshlrev_b32', V(ad), '4', V(q))
        e.valu('v_add_u32', V(ad), str(SML), V(ad))
        e.valu('v_lshlrev_b32', V(vo), '4', V(self.vLane))
        L = self.QF + 4
        for ip in range(np_):
            e.ds_read('ds_read_b128', V(L + ip * 4, 4), V(ad), off=self.pts[ip] * 256)
        for ip in range(np_):
            x = L + ip * 4
            e.valu('v_add_f32', V(x), V(x), V(x + 1))
            e.valu('v_add_f32', V(x + 2), V(x + 2), V(x + 3))
            e.valu('v_add_f32', V(x), V(x), V(x + 2))
            e.valu('v_rcp_f32', V(x), V(x))
        for ip in range(np_):
            x = L + ip * 4
            o = self.oa(ip, 0)
            for i in range(12):
                e.valu('v_mul_f32', V(o + i), V(x), V(o + i))
            for i in range(6):
                e.valu('v_cvt_pk_bf16_f32', V(o + i), V(o + 2 * i), V(o + 2 * i + 1))
            rt = self.pts[ip]
            e.salu('s_add_u32', S(self.st0), S(self.sOB), S(self.sPo))
            e.salu('s_add_u32', S(self.st1), S(self.sOB), S(self.sSo))
            if rt >> 2:
                e.salu('s_add_u32', S(self.st0), S(self.st0), str((rt >> 2) * 4096))
                e.salu('s_add_u32', S(self.st1), S(self.st1), str((rt >> 2) * 4096))
            e.bstore('buffer_store_dwordx4', V(o, 4), V(vo), S(self.sO, 4), S(self.st0), off=(rt & 3) * 1024, tag='ost')
            e.bstore('buffer_store_dwordx2', V(o + 4, 2), V(vo), S(self.sO, 4), S(self.st1), off=(rt & 3) * 1024, tag='ost')

    def stamp(self):
        if not self.dbg:
            return
        e = self.e
        e.raw('    s_memtime s[70:71]')
        e.raw('    s_waitcnt lgkmcnt(0)')
        e.lds = []
        e.valu('v_mov_b32', V(self.t1), 's70')
        e.raw('    buffer_store_dword %s, off, s[%d:%d], s72' % (V(self.t1), self.sO, self.sO + 3))
        e.vm.append(('stamp', set()))
        e.pos += 3
        e.salu('s_add_u32', 's72', 's72', '4')

    def rstamp(self):
        if not self.dbg:
            return
        e = self.e
        e.raw('    s_memrealtime s[70:71]')
        e.raw('    s_waitcnt lgkmcnt(0)')
        e.lds = []
        e.valu('v_mov_b32', V(self.t1), 's70')
        e.raw('    buffer_store_dword %s, off, s[%d:%d], s72' % (V(self.t1), self.sO, self.sO + 3))
        e.vm.append(('stamp', set()))
        e.pos += 3
        e.salu('s_add_u32', 's72', 's72', '4')

    def head(self):
        for c in range(10):
            self.seg_q(c)
        self.exchange()
        for j in range(-1, 9):
            self.seg_a(j)

    def retag(self):
        self.e.vm = [((t[0], t[1], False) if isinstance(t, tuple) else t, d) for t, d in self.e.vm]

    def body(self):
        e = self.e
        g = self.g
        ln, t, u = self.vLane, self.t0, self.t1
        e.valu('v_and_b32', V(ln), '63', 'v0')
        e.valu('v_lshrrev_b32', V(t), '3', V(ln))
        e.valu('v_lshrrev_b32', V(u), '4', V(ln))
        e.valu('v_lshlrev_b32', V(u), '1', V(u))
        e.valu('v_and_b32', V(self.t2), '7', V(ln))
        e.valu('v_xor_b32', V(u), V(u), V(self.t2))
        e.valu('v_lshlrev_b32', V(u), '4', V(u))
        e.valu('v_mul_u32_u24', V(self.vKV), '384', V(t))
        e.valu('v_add3_u32', V(self.vKV), V(self.vKV), V(u), S(self.sW3))
        e.salu('s_and_b32', S(self.st0), S(self.sWv), '1')
        e.salu('s_lshl_b32', S(self.st0), S(self.st0), '2')
        e.valu('v_bfe_u32', V(u), V(ln), '4', '1')
        e.valu('v_lshlrev_b32', V(u), '1', V(u))
        e.valu('v_or_b32', V(u), S(self.st0), V(u))
        e.valu('v_xor_b32', V(u), V(u), V(self.t2))
        e.valu('v_lshlrev_b32', V(u), '4', V(u))
        e.valu('v_mul_u32_u24', V(self.vW), '12288', V(t))
        e.salu('s_mul_i32', S(self.st0), S(self.sWv), '98304')
        e.valu('v_add3_u32', V(self.vW), V(self.vW), V(u), S(self.st0))
        e.salu('s_mul_i32', S(self.st0), S(self.sWv), '9')
        e.valu('v_lshrrev_b32', V(u), '4', V(ln))
        e.valu('v_add_u32', V(u), S(self.st0), V(u))
        e.valu('v_and_b32', V(u), '3', V(u))
        e.valu('v_lshlrev_b32', V(u), '1', V(u))
        e.valu('v_xor_b32', V(u), V(u), V(self.t2))
        e.valu('v_lshlrev_b32', V(u), '4', V(u))
        e.valu('v_mul_u32_u24', V(self.vX), '1280', V(t))
        e.salu('s_mul_i32', S(self.st0), S(self.sWv), '23040')
        e.valu('v_add3_u32', V(self.vX), V(self.vX), V(u), S(self.st0))
        e.valu('v_lshlrev_b32', V(t), '4', V(ln))
        e.valu('v_add_u32', V(self.aP), str(PX), V(t))
        e.salu('s_and_b32', S(self.st0), S(self.sS), '1')
        e.salu('s_lshl_b32', S(self.st0), S(self.st0), '3')
        e.salu('s_lshr_b32', S(self.st1), S(self.sS), '1')
        e.salu('s_lshl_b32', S(self.st1), S(self.st1), '10')
        e.salu('s_add_u32', S(self.st0), S(self.st0), S(self.st1))
        e.valu('v_add_u32', V(self.aPw), S(self.st0), V(self.aP))
        e.valu('v_and_b32', V(t), '15', V(ln))
        e.valu('v_mul_u32_u24', V(t), '48', V(t))
        e.valu('v_add_u32', V(self.aM), str(SMM), V(t))
        for f in self.dma_tile('W', 0) + self.dma_tile('W', 1) + self.dma_x_joined(0) + self.dma_x_joined(2) + (self.dma_tile('K', 0) if K0SEG < 0 else []):
            f()
        self.l2_prefetch()
        if os.environ.get('PFO', 'start') == 'start':
            self.fo()
        e.wait_vm0()
        e.barrier()
        self.rstamp()
        self.stamp()
        e.wait_vm0()
        save = (e.lines, e.hist, e.pos, e.lds, e.vm, self.vslot)
        e.lines, e.hist, e.lds, e.vm = [], [], [], []
        self.head()
        self.retag()
        inq = list(e.vm)
        e.lines, e.hist, e.pos, e.lds, e.vm, self.vslot = save
        e.vm = list(inq)
        e.flush_hazards()
        e.label('L_head_%d' % g)
        self.head()
        self.retag()
        assert [t for t, _ in e.vm] == [t for t, _ in inq], (e.vm, inq)
        e.salu('s_mov_b32', S(self.sBH), S(self.sBHn))
        e.salu('s_mov_b32', S(self.sHW), S(self.sHWn))
        e.salu('s_add_u32', S(self.sBHn), S(self.sBHn), '196608')
        e.salu('s_add_u32', S(self.sHWn), S(self.sHWn), '384')
        e.salu('s_add_u32', S(self.sOB), S(self.sOB), str(6 * 147456))
        e.salu('s_add_u32', S(self.sCnt), S(self.sCnt), '1')
        e.flush_hazards()
        e.salu('s_cmp_lt_u32', None, S(self.sCnt), '4')
        e.raw('    s_cbranch_scc1 L_head_%d' % g)
        self.rstamp()
        if os.environ.get('PFO') == 'end':
            self.fo()
        e.raw('    s_endpgm')


def srd(e, d, lo, hi, nbytes):
    e.salu('s_mov_b32', S(d), S(lo))
    e.salu('s_and_b32', S(d + 1), S(hi), '0xffff')
    e.salu('s_mov_b32', S(d + 2), str(nbytes))
    e.salu('s_mov_b32', S(d + 3), '0x00020000')


def gen_k1(dbg=False):
    e = Em()
    if NOMFMA:
        e.mfma = lambda *a: None
    if os.environ.get('NODMA'):
        e.dma = lambda *a, **k: None
    if os.environ.get('NOLDSR'):
        e.ds_read = lambda *a, **k: None
    k = K1
    e.raw('.p2align 8')
    e.raw('attn_kernel:')
    e.salu('s_cmp_ge_u32', None, 's2', '256')
    e.raw('    s_cbranch_scc1 L_k1_exit')
    e.raw('    s_load_dwordx8 s[48:55], s[0:1], 0')
    e.raw('    s_load_dwordx8 s[56:63], s[0:1], 40')
    e.raw('    s_load_dwordx2 s[64:65], s[0:1], 96')
    e.raw('    s_load_dwordx2 s[94:95], s[0:1], 32')
    e.raw('    s_load_dwordx2 s[96:97], s[0:1], 72')
    e.salu('s_and_b32', 's3', 's2', '7')
    e.salu('s_lshr_b32', 's4', 's2', '3')
    e.salu('s_lshr_b32', 's5', 's3', '2')
    e.salu('s_and_b32', 's6', 's3', '3')
    e.salu('s_lshr_b32', 's7', 's6', '1')
    e.salu('s_lshl_b32', 's7', 's7', '3')
    e.salu('s_lshr_b32', 's66', 's4', '2')
    e.salu('s_add_u32', 's7', 's7', 's66')
    e.salu('s_and_b32', 's66', 's6', '1')
    e.salu('s_lshl_b32', 's66', 's66', '2')
    e.salu('s_and_b32', 's67', 's4', '3')
    e.salu('s_add_u32', 's66', 's66', 's67')
    e.salu('s_lshl_b32', 's66', 's66', '2')
    e.raw('    s_waitcnt lgkmcnt(0)')
    e.salu('s_cmp_eq_u32', None, 's5', '0')
    for i in range(8):
        e.salu('s_cselect_b32', S(48 + i), S(48 + i), S(56 + i))
    e.salu('s_cselect_b32', 's94', 's94', 's96')
    e.salu('s_cselect_b32', 's95', 's95', 's97')
    srd(e, 88, 94, 95, 7864320)
    srd(e, k.sX, 48, 49, 2949120)
    srd(e, k.sK, 50, 51, 100663296)
    srd(e, k.sVv, 52, 53, 100663296)
    srd(e, k.sW, 54, 55, 7864320)
    srd(e, k.sO, 64, 65, 440008704 if dbg else 56623104)
    e.valu('v_lshrrev_b32', 'v1', '6', 'v0')
    e.rfl(S(k.sWv), 'v1')
    e.salu('s_and_b32', S(k.sS), S(k.sWv), '3')
    e.salu('s_mul_i32', S(k.sW3), S(k.sWv), '3072')
    e.salu('s_mul_i32', S(k.sW2), S(k.sWv), '2304')
    e.salu('s_lshl_b32', 's67', 's7', '5')
    e.salu('s_add_u32', 's67', 's67', 's66')
    e.salu('s_mul_i32', S(k.sBH), 's67', '196608')
    e.salu('s_add_u32', S(k.sBHn), S(k.sBH), '196608')
    e.salu('s_mul_i32', S(k.sHW), 's66', '384')
    e.salu('s_add_u32', S(k.sHWn), S(k.sHW), '384')
    e.salu('s_mul_i32', S(k.sXB), 's7', '184320')
    e.salu('s_mul_i32', 's67', 's5', '192')
    e.salu('s_mul_i32', 's68', 's66', '6')
    e.salu('s_add_u32', 's67', 's67', 's68')
    e.salu('s_mul_i32', 's67', 's67', '144')
    e.salu('s_mul_i32', 's68', 's7', '9')
    e.salu('s_add_u32', 's67', 's67', 's68')
    e.salu('s_lshl_b32', S(k.sOB), 's67', '10')
    e.salu('s_mov_b32', S(k.sCnt), '0')
    e.salu('s_mov_b32', S(k.sC), f32hex(SCALE_C))
    e.salu('s_lshr_b32', 's67', 's4', '2')
    e.salu('s_mul_i32', 's67', 's67', '80')
    e.salu('s_mul_i32', 's68', S(k.sWv), '10')
    e.salu('s_add_u32', 's67', 's67', 's68')
    e.salu('s_mul_i32', 's74', 's67', '12288')
    e.salu('s_and_b32', 's67', 's4', '3')
    e.salu('s_mul_i32', 's67', 's67', '360')
    e.salu('s_mul_i32', 's68', S(k.sWv), '45')
    e.salu('s_add_u32', 's67', 's67', 's68')
    e.salu('s_lshl_b32', 's67', 's67', '7')
    e.salu('s_add_u32', 's75', 's67', S(k.sXB))
    e.salu('s_lshl_b32', 's67', 's7', '3')
    e.salu('s_lshr_b32', 's68', 's66', '2')
    e.salu('s_add_u32', 's67', 's67', 's68')
    e.salu('s_mul_i32', 's67', 's67', '61440')
    e.salu('s_mul_i32', 's68', S(k.sWv), '7680')
    e.salu('s_add_u32', 's92', 's67', 's68')
    e.salu('s_mul_i32', 's67', S(k.sS), '3')
    e.salu('s_and_b32', 's68', S(k.sS), '1')
    e.salu('s_add_u32', S(k.sT[0]), 's67', 's68')
    e.salu('s_add_u32', S(k.sT[1]), S(k.sT[0]), '1')
    e.salu('s_add_u32', S(k.sT[2]), 's67', '2')
    e.salu('s_cmp_eq_u32', None, 's68', '1')
    e.salu('s_cselect_b32', S(k.sT[2]), 's67', S(k.sT[2]))
    e.salu('s_lshr_b32', 's67', S(k.sT[0]), '1')
    e.salu('s_mul_i32', S(k.sPo), 's67', '147456')
    e.salu('s_lshr_b32', 's67', S(k.sT[2]), '1')
    e.salu('s_mul_i32', S(k.sSo), 's67', '147456')
    e.salu('s_and_b32', 's67', S(k.sT[2]), '1')
    e.salu('s_lshl_b32', 's67', 's67', '3')
    e.salu('s_add_u32', S(k.sSo), S(k.sSo), 's67')
    if dbg:
        e.salu('s_lshl_b32', 's72', 's2', '3')
        e.salu('s_add_u32', 's72', 's72', S(k.sWv))
        e.salu('s_lshl_b32', 's72', 's72', '10')
        e.salu('s_add_u32', 's72', 's72', str(64 << 20))
    e.salu('s_cmp_ge_u32', None, S(k.sWv), '4')
    e.raw('    s_cbranch_scc1 L_grp1')
    e.flush_hazards()
    K1(e, 0, dbg).body()
    e.label('L_grp1')
    e.flush_hazards()
    e.lds, e.vm = [], []
    K1(e, 1, dbg).body()
    e.label('L_k1_exit')
    e.raw('    s_endpgm')
    return e.text()


def gen_k2():
    e = Em()
    if os.environ.get('K2NOMFMA'):
        e.mfma = lambda *a: None
    NR, NC = 6, 8
    if os.environ.get('K2NOW'):
        e.dma = lambda *a, **k: None
    if os.environ.get('K2NOO'):
        e.bload = lambda *a, **k: None
    e.raw('.p2align 8')
    e.raw('oproj_kernel:')
    e.salu('s_cmp_ge_u32', None, 's2', '240')
    e.raw('    s_cbranch_scc1 L_k2_exit')
    e.raw('    s_load_dwordx2 s[4:5], s[0:1], 32')
    e.raw('    s_load_dwordx2 s[6:7], s[0:1], 72')
    e.raw('    s_load_dwordx2 s[8:9], s[0:1], 80')
    e.raw('    s_load_dwordx2 s[10:11], s[0:1], 96')
    sWo, sOw, sOut = 12, 16, 20
    sWv, sBlk, sMt, sNs, sO0, sO1, sWoff, sCnt, sLb, sOo, st = 24, 25, 26, 27, 28, 29, 31, 32, 33, 34, 35
    e.salu('s_and_b32', 's3', 's2', '7')
    e.salu('s_lshr_b32', 's36', 's2', '3')
    e.salu('s_lshr_b32', S(sBlk), 's3', '2')
    e.salu('s_and_b32', 's3', 's3', '3')
    e.salu('s_mul_i32', 's3', 's3', '6')
    e.salu('s_mul_i32', 's37', 's36', '13108')
    e.salu('s_lshr_b32', 's37', 's37', '16')
    e.salu('s_add_u32', S(sMt), 's3', 's37')
    e.salu('s_mul_i32', 's37', 's37', '5')
    e.salu('s_sub_u32', S(sNs), 's36', 's37')
    e.raw('    s_waitcnt lgkmcnt(0)')
    e.salu('s_cmp_eq_u32', None, S(sBlk), '0')
    e.salu('s_cselect_b32', 's4', 's4', 's6')
    e.salu('s_cselect_b32', 's5', 's5', 's7')
    srd(e, sWo, 4, 5, 7864320)
    srd(e, sOw, 10, 11, 56623104)
    srd(e, sOut, 8, 9, 5898240)
    e.valu('v_lshrrev_b32', 'v1', '6', 'v0')
    e.rfl(S(sWv), 'v1')
    OF = lambda stg, r: stg * 24 + r * 4
    WF = lambda buf, nt: 96 + buf * 32 + nt * 4
    vWo = [160, 161]
    aT = [162 + i for i in range(8)]
    vOo, vL, t0, t1, t2, t3 = 170, 171, 172, 173, 174, 175
    acc = lambda nt, r: (nt * NR + r) * 4
    e.valu('v_and_b32', V(vL), '63', 'v0')
    e.valu('v_lshlrev_b32', V(vOo), '4', V(vL))
    e.valu('v_lshrrev_b32', V(t0), '4', V(vL))
    e.valu('v_and_b32', V(t1), '15', V(vL))
    for p in range(2):
        e.valu('v_add_u32', V(t2), str(4 * p), V(t0))
        e.valu('v_lshlrev_b32', V(t2), '1', V(t2))
        e.valu('v_xor_b32', V(t2), V(t2), V(t1))
        e.valu('v_lshlrev_b32', V(t2), '4', V(t2))
        e.valu('v_mul_u32_u24', V(t3), '1280', V(t0))
        e.valu('v_add_u32', V(vWo[p]), V(t2), V(t3))
    e.salu('s_lshl_b32', S(sLb), S(sWv), '15')
    e.valu('v_lshrrev_b32', V(t0), '2', V(vL))
    e.valu('v_and_b32', V(t1), '7', V(t0))
    e.valu('v_lshlrev_b32', V(t0), '8', V(t0))
    e.valu('v_and_b32', V(t2), '3', V(vL))
    e.valu('v_lshl_add_u32', V(t0), V(t2), '3', V(t0))
    e.valu('v_add_u32', V(t0), S(sLb), V(t0))
    for nt in range(NC):
        e.valu('v_xor_b32', V(t2), str(nt), V(t1))
        e.valu('v_lshl_add_u32', V(aT[nt]), V(t2), '5', V(t0))
    e.salu('s_mul_i32', S(st), S(sBlk), '192')
    e.salu('s_mul_i32', 's36', S(sWv), '48')
    e.salu('s_add_u32', S(st), S(st), 's36')
    e.salu('s_mul_i32', S(st), S(st), '144')
    e.salu('s_mul_i32', 's37', S(sMt), '6')
    e.salu('s_add_u32', S(st), S(st), 's37')
    e.salu('s_lshl_b32', S(sO0), S(st), '10')
    e.salu('s_add_u32', S(sO1), S(sO0), '4096')
    e.salu('s_mul_i32', S(sWoff), 's36', '40960')
    e.salu('s_lshl_b32', S(st), S(sNs), '8')
    e.salu('s_add_u32', S(sWoff), S(sWoff), S(st))
    e.salu('s_mul_i32', S(sOo), S(sMt), str(96 * 2560))
    e.salu('s_mul_i32', 's37', S(sBlk), '1280')
    e.salu('s_add_u32', S(sOo), S(sOo), 's37')
    e.salu('s_add_u32', S(sOo), S(sOo), S(st))
    e.salu('s_mov_b32', S(sCnt), '0')

    STG = lambda u, i: 192 + (u & 1) * 32 + i * 4
    aSt = 179

    def issue(u):
        for i in range(8):
            if os.environ.get('K2LIN'):
                if i:
                    e.salu('s_add_u32', S(st), S(sWoff), str(1024 * i))
                e.bload('buffer_load_dwordx4', A(STG(u, i), 4), V(vOo), S(sWo, 4), S(st if i else sWoff), tag=('w', u % 4))
                continue
            if i:
                e.salu('s_add_u32', S(st), S(sWoff), str(5120 * i))
            e.bload('buffer_load_dwordx4', A(STG(u, i), 4), V(vWo[i & 1]), S(sWo, 4), S(st if i else sWoff), tag=('w', u % 4))
        e.salu('s_add_u32', S(sWoff), S(sWoff), '40960')

    def issue_o(u):
        for r in range(NR):
            e.bload('buffer_load_dwordx4', V(OF(u % 4, r), 4), V(vOo), S(sOw, 4), S([sO0, sO1][r >> 2]), off=(r & 3) * 1024, tag=('o', u % 4))
        e.salu('s_add_u32', S(sO0), S(sO0), '147456')
        e.salu('s_add_u32', S(sO1), S(sO1), '147456')

    def stw(u):
        for i in range(8):
            e.ds_write('ds_write_b128', V(aSt), A(STG(u, i), 4), off=(u & 1) * 8192 + i * 1024)

    def ldw(u):
        for nt in range(NC):
            e.ds_read('ds_read_b64_tr_b16', V(WF(u & 1, nt), 2), V(aT[nt]), off=(u & 1) * 8192)
            e.ds_read('ds_read_b64_tr_b16', V(WF(u & 1, nt) + 2, 2), V(aT[nt]), off=(u & 1) * 8192 + 4096)

    e.valu('v_add_u32', V(aSt), S(sLb), V(vOo))
    K2DBG = os.environ.get('K2DBG')

    def kst(i):
        if not K2DBG:
            return
        e.raw('    s_memtime s[40:41]')
        e.raw('    s_waitcnt lgkmcnt(0)')
        e.lds = []
        e.valu('v_mov_b32', V(t3), 's40')
        e.salu('s_lshl_b32', 's42', 's2', '2')
        e.salu('s_add_u32', 's42', 's42', S(sWv))
        e.salu('s_lshl_b32', 's42', 's42', '5')
        e.salu('s_add_u32', 's42', 's42', str((70 << 20) + 4 * i))
        e.raw('    buffer_store_dword %s, off, s[44:47], s42' % V(t3))
        e.vm.append(('stamp', set()))
    if K2DBG:
        srd(e, 44, 10, 11, 440008704)
    kst(0)
    for a in range(NR * NC * 4):
        e.valu('v_accvgpr_write_b32', A(a), '0')
    issue_o(0)
    issue(0)
    issue_o(1)
    issue(1)
    issue_o(2)
    stw(0)
    ldw(0)

    def body():
        for u in range(4):
            issue(u + 2)
            issue_o(u + 3)
            n = 0
            for r in range(NR):
                for nt in range(NC):
                    e.mfma(A(acc(nt, r), 4), V(WF(u & 1, nt), 4), V(OF(u % 4, r), 4), A(acc(nt, r), 4))
                    n += 1
                    if n == 16:
                        stw(u + 1)
                    if n == 28:
                        ldw(u + 1)
    save = (e.lines, e.hist, e.pos, e.lds, e.vm)
    vm_in = list(e.vm)
    e.lines = []
    body()
    vm_out = list(e.vm)
    e.lines, e.hist, e.pos, e.lds, e.vm = save
    if not os.environ.get('K2NOMFMA'):
        assert [t for t, _ in vm_out] == [t for t, _ in vm_in], (vm_out, vm_in)
    kst(1)
    if K2DBG:
        e.vm = list(vm_in)
    e.flush_hazards()
    e.label('L_k2_loop')
    body()
    e.salu('s_add_u32', S(sCnt), S(sCnt), '1')
    e.salu('s_cmp_lt_u32', None, S(sCnt), '12')
    e.raw('    s_cbranch_scc1 L_k2_loop')
    e.flush_hazards()
    kst(2)
    e.wait_vm0()
    e.barrier()
    kst(3)
    tiles = [(nt, r) for nt in range(NC) for r in range(NR)]
    rounds = [tiles[:24], tiles[24:]]
    aR, aRw, vS = 176, 177, 178
    e.valu('v_lshlrev_b32', V(aR), '4', V(vL))
    e.salu('s_mul_i32', S(st), S(sWv), '24576')
    e.valu('v_add_u32', V(aRw), S(st), V(aR))
    e.valu('v_add_u32', V(t2), '49152', V(aR))
    e.valu('v_and_b32', V(t0), '15', V(vL))
    e.valu('v_mul_u32_u24', V(t0), '2560', V(t0))
    e.valu('v_lshrrev_b32', V(t1), '4', V(vL))
    e.valu('v_lshl_add_u32', V(vS), V(t1), '3', V(t0))
    for ri, rd in enumerate(rounds):
        for ti, (nt, r) in enumerate(rd):
            e.ds_write('ds_write_b128', V(aRw), A(acc(nt, r), 4), off=ti * 1024)
        e.barrier()
        for w in range(4):
            lab = 'L_k2_r%d_w%d' % (ri, w)
            e.salu('s_cmp_lg_u32', None, S(sWv), str(w))
            e.raw('    s_cbranch_scc1 %s' % lab)
            mine = [(ti, t) for ti, t in enumerate(rd) if ti % 4 == w]
            for n, (ti, (nt, r)) in enumerate(mine):
                b = n * 16
                for p in range(4):
                    ad, of = (aR, p * 24576 + ti * 1024) if p < 2 else (t2, (p - 2) * 24576 + ti * 1024)
                    e.ds_read('ds_read_b128', V(b + p * 4, 4), V(ad), off=of)
            for n, (ti, (nt, r)) in enumerate(mine):
                b = n * 16
                for i in range(4):
                    e.valu('v_add_f32', V(b + i), V(b + i), V(b + 4 + i))
                    e.valu('v_add_f32', V(b + 8 + i), V(b + 8 + i), V(b + 12 + i))
                for i in range(4):
                    e.valu('v_add_f32', V(b + i), V(b + i), V(b + 8 + i))
                e.valu('v_cvt_pk_bf16_f32', V(b), V(b), V(b + 1))
                e.valu('v_cvt_pk_bf16_f32', V(b + 1), V(b + 2), V(b + 3))
                e.salu('s_add_u32', S(st), S(sOo), str(r * 40960 + nt * 32))
                e.bstore('buffer_store_dwordx2', V(b, 2), V(vS), S(sOut, 4), S(st), tag='out')
            e.wait_lds()
            e.label(lab)
            e.flush_hazards()
        if ri == 0:
            e.barrier()
    kst(4)
    e.label('L_k2_exit')
    e.raw('    s_endpgm')
    return e.text()


HEADER = open('cdna_kernels/%s.s.ref' % NAME).read().split('; Override launch')[0]


def kd(name, vgpr, acc, sgpr=102):
    return '''.amdhsa_kernel %s
  .amdhsa_next_free_vgpr %d
  .amdhsa_next_free_sgpr %d
  .amdhsa_accum_offset %d
  .amdhsa_group_segment_fixed_size 0
  .amdhsa_kernarg_size 104
  .amdhsa_user_sgpr_count 2
  .amdhsa_user_sgpr_kernarg_segment_ptr 1
  .amdhsa_system_sgpr_workgroup_id_x 1
.end_amdhsa_kernel
''' % (name, vgpr, sgpr, acc)


def main():
    out = HEADER
    out += '; @launch kernel=attn_kernel grid=(256,1,1) block=(512,1,1) lds=163840\n'
    out += '; @launch kernel=oproj_kernel grid=(240,1,1) block=(256,1,1) lds=131072\n'
    out += '.amdgcn_target "amdgcn-amd-amdhsa--gfx950"\n.text\n'
    out += '.globl attn_kernel\n.type attn_kernel,@function\n.globl oproj_kernel\n.type oproj_kernel,@function\n'
    out += gen_k1('dbg' in sys.argv)
    out += gen_k2()
    out += '.section .rodata,"a"\n.p2align 6\n'
    out += kd('attn_kernel', 256, 256)
    out += '.p2align 6\n'
    out += kd('oproj_kernel', 512, 256)
    dst = sys.argv[1] if len(sys.argv) > 1 else 'cdna_kernels/%s.s' % NAME
    open(dst, 'w').write(out)
    print('wrote', dst, len(out), 'bytes')


if __name__ == '__main__':
    main()
```

```python
import math, sys, os
NOMFMA = os.environ.get('NOMFMA')
K0SEG = int(os.environ.get('K0SEG', '-1'))
PFSEG = int(os.environ.get('PFSEG', '6'))
STAG = int(os.environ.get('STAG', '0'))
K1SEG = int(os.environ.get('K1SEG', '8'))
NOMID = os.environ.get('NOMID')
USE_NT = not os.environ.get('NONT')
USE_PF = not os.environ.get('NOPF')
NOSM = os.environ.get('NOSM')
from em import Em, V, A, S, f32hex

NAME = 'concat_heads__gqa_block_cached__mha_block_cached__near_ridge'

TILE = 24576
VW = 0
KR = 73728
PX = 122880
PXB = 18432
SML = 159744
SMM = SML + 2304
LDS1 = 163840
XBUF = [PX, PX + PXB, KR + TILE]
XBASE = KR + TILE

SCALE_C = (192 ** -0.5) * math.log2(math.e)


def weave(e, main, fills):
    nm = sum(1 for k, _ in main if k == 'm')
    after = {}
    for lo, hi, fl in fills:
        if not fl:
            continue
        hi = min(hi, nm - 1)
        lo = min(lo, hi)
        if nm == 0:
            after.setdefault(-1, []).extend(fl)
            continue
        span = hi - lo + 1
        for i, f in enumerate(fl):
            after.setdefault(lo + (i * span) // len(fl), []).append(f)
    for f in after.get(-1, []):
        f()
    i = 0
    for k, fn in main:
        fn()
        if k == 'm':
            for f in after.get(i, []):
                f()
            i += 1


def dpos(g, n, nm, kind=0):
    if g == 0 or not (STAG >> kind) & 1:
        return (0, n)
    lo = max(0, nm - 3 - n)
    return (lo, lo + n)


class K1:
    sK, sVv, sW, sX, sO = 8, 12, 16, 20, 24
    sWv, sS, sW3, sW2 = 28, 29, 30, 31
    sBH, sHW, sXB, sOB, sCnt, sC = 32, 33, 34, 35, 36, 37
    sT = [38, 39, 40]
    sBHn, sHWn = 41, 42
    sPo, sSo = 43, 44
    st0, st1, st2 = 45, 46, 47

    def __init__(self, e, grp, dbg=None):
        self.e = e
        self.g = grp
        self.dbg = dbg
        if grp == 0:
            self.qts = [0, 1, 2, 3, 4]
            self.pts = [0, 1, 2, 3]
            self.rt0 = 0
        else:
            self.qts = [5, 6, 7, 8]
            self.pts = [4, 5, 6, 7, 8]
            self.rt0 = 4
        nq, np_ = len(self.qts), len(self.pts)
        self.nq, self.np = nq, np_
        self.QF = 0
        self.OA = nq * 24
        self.SS = self.OA + np_ * 12
        assert self.SS + nq * 4 <= 188
        r = 188
        self.KF = [r, r + 4]; r += 8
        self.VF = [r, r + 4, r + 8]; r += 12
        self.PF = [r, r + 4, r + 8]; r += 12
        self.mq = [r, r + 4]; r += 8
        self.m1 = [r, r + 1]; r += 2
        self.l = r; r += 5
        self.al = r; r += 5
        self.vLane = r; r += 1
        self.vKV = r; r += 1
        self.vW = r; r += 1
        self.vX = r; r += 1
        self.aK = [r, r + 1]; r += 2
        self.aV = [r, r + 1, r + 2]; r += 3
        self.aP = r; r += 1
        self.aPw = r; r += 1
        self.aM = r; r += 1
        self.t0 = r; r += 1
        self.t1 = r; r += 1
        self.t2 = r; r += 1
        self.t3 = r; r += 1
        assert r <= 256, r
        self.aX = self.aK
        self.aW = self.aV
        self.vslot = None

    def qf(self, iq, ks):
        return self.QF + iq * 24 + ks * 4

    def acc(self, iq, dt):
        return self.qf(iq, 3 + dt)

    def oa(self, ip, dt):
        return self.OA + ip * 12 + dt * 4

    def ss(self, iq):
        return self.SS + iq * 4

    def mreg(self, st, idx):
        return self.m1[st] if idx == 0 else self.mq[st] + idx - 1

    def dma_tile(self, kind, idx, nxt=False):
        e = self.e
        fns = []
        tag = (kind, idx, nxt)
        if kind == 'W':
            slot = VW + (idx % 3) * TILE
            base, add, srd, voff = (self.sHWn if nxt else self.sHW), idx * 786432, self.sW, self.vW
        elif kind == 'V':
            slot = VW + ((10 + idx) % 3) * TILE
            base, add, srd, voff = (self.sBHn if nxt else self.sBH), idx * TILE, self.sVv, self.vKV
        else:
            slot = KR + (idx & 1) * TILE
            base, add, srd, voff = (self.sBHn if nxt else self.sBH), idx * TILE, self.sK, self.vKV
        for i in range(3):
            def f(i=i):
                if i == 0:
                    e.salu('s_add_u32', S(self.st0), S(base), str(add))
                e.salu('s_add_u32', 'm0', S(self.sW3), str(slot + i * 1024 - i * 128))
                e.dma(V(voff), S(srd, 4), S(self.st0), off=i * 128, tag=tag, nt=(kind != 'W' and USE_NT))
            fns.append(f)
        return fns

    def xbuf(self, c):
        return XBUF[c % 3] if c <= 5 else XBUF[c & 1]

    def dma_x(self, c):
        e = self.e
        fns = []
        tag = ('x', c, False)
        for n in range(3):
            def f(n=n):
                e.salu('s_add_u32', S(self.st1), S(self.sXB), str(c * 128 + 9216 * n))
                if n == 0:
                    e.salu('s_add_u32', 'm0', S(self.sW2), str(self.xbuf(c)))
                if n == 2:
                    e.salu('s_mov_b64', 'exec', '0xffff')
                e.dma(V(self.vX), S(self.sX, 4), S(self.st1), off=n * 1024, tag=tag)
                if n == 2:
                    e.salu('s_mov_b64', 'exec', '-1')
            fns.append(f)
        return fns

    def dma_x_joined(self, c):
        fl = self.dma_x(c)

        def f():
            for x in fl:
                x()
        return [f]

    def l2_prefetch(self):
        e = self.e

        def fw():
            e.valu('v_min_u32', V(self.t2), '29', V(self.vLane))
            e.valu('v_mul_u32_u24', V(self.t3), '43', V(self.t2))
            e.valu('v_lshrrev_b32', V(self.t3), '7', V(self.t3))
            e.valu('v_mul_u32_u24', V(self.t1), '3', V(self.t3))
            e.valu('v_sub_u32', V(self.t2), V(self.t2), V(self.t1))
            e.valu('v_lshlrev_b32', V(self.t2), '7', V(self.t2))
            e.valu('v_mul_u32_u24', V(self.t3), '12288', V(self.t3))
            e.valu('v_add_u32', V(self.t2), V(self.t2), V(self.t3))
            e.salu('s_add_u32', S(self.st2), 's74', S(self.sHWn))
            e.bload('buffer_load_dword', V(self.t3), V(self.t2), S(self.sW, 4), S(self.st2), tag='pf')

        def fx():
            e.valu('v_min_u32', V(self.t2), '44', V(self.vLane))
            e.valu('v_lshlrev_b32', V(self.t2), '7', V(self.t2))
            e.raw('    buffer_load_dword %s, %s, s[%d:%d], s75 offen' % (V(self.t3), V(self.t2), self.sX, self.sX + 3))
            e.vm.append(('pf', set()))
            e.pos += 1
        def fo():
            e.valu('v_min_u32', V(self.t2), '59', V(self.vLane))
            e.valu('v_lshlrev_b32', V(self.t2), '7', V(self.t2))
            e.raw('    buffer_load_dword %s, %s, s[88:91], s92 offen' % (V(self.t3), V(self.t2)))
            e.vm.append(('pf', set()))
            e.pos += 1
        self.fo = fo
        return [fw, fx]

    def lane_fields(self, q, g, r=None, c=None):
        e = self.e
        e.valu('v_and_b32', V(q), '15', V(self.vLane))
        e.valu('v_lshrrev_b32', V(g), '4', V(self.vLane))
        if r is not None:
            e.valu('v_bfe_u32', V(r), V(self.vLane), '2', '2')
            e.valu('v_and_b32', V(c), '3', V(self.vLane))

    def setup_tr_addr(self, dst, kindW):
        e = self.e
        q, g, r, c, sw, t, u, base = [self.KF[0] + i for i in range(8)]
        self.lane_fields(q, g, r, c)
        if kindW:
            e.valu('v_lshrrev_b32', V(sw), '1', V(r))
            e.valu('v_and_b32', V(t), '1', V(g))
            e.valu('v_lshl_add_u32', V(sw), V(t), '1', V(sw))
            e.valu('v_lshlrev_b32', V(sw), '1', V(sw))
            e.valu('v_mul_u32_u24', V(base), '3072', V(g))
            e.valu('v_lshl_add_u32', V(base), V(r), '7', V(base))
        else:
            e.valu('v_lshrrev_b32', V(sw), '1', V(r))
            e.valu('v_lshl_add_u32', V(sw), V(g), '1', V(sw))
            e.valu('v_and_b32', V(sw), '3', V(sw))
            e.valu('v_lshlrev_b32', V(sw), '1', V(sw))
            e.valu('v_lshrrev_b32', V(t), '1', V(g))
            e.valu('v_mul_u32_u24', V(base), '3072', V(t))
            e.valu('v_and_b32', V(t), '1', V(g))
            e.valu('v_lshl_add_u32', V(t), V(t), '2', V(r))
            e.valu('v_lshl_add_u32', V(base), V(t), '7', V(base))
        e.valu('v_and_b32', V(t), '1', V(c))
        e.valu('v_lshl_add_u32', V(base), V(t), '3', V(base))
        e.valu('v_lshrrev_b32', V(c), '1', V(c))
        for dt in range(3):
            e.salu('s_lshl_b32', S(self.st0), S(self.sT[dt]), '1')
            e.valu('v_add_u32', V(t), S(self.st0), V(c))
            e.valu('v_lshrrev_b32', V(u), '3', V(t))
            e.valu('v_and_b32', V(t), '7', V(t))
            e.valu('v_xor_b32', V(t), V(t), V(sw))
            e.valu('v_lshl_add_u32', V(t), V(t), '4', V(base))
            e.valu('v_lshl_add_u32', V(dst[dt]), V(u), '10', V(t))

    def setup_qproj_addr(self):
        e = self.e
        self.setup_tr_addr(self.aW, True)
        q, g, sw, t = [self.KF[0] + i for i in range(4)]
        self.lane_fields(q, g)
        e.valu('v_and_b32', V(sw), '6', V(q))
        e.valu('v_xor_b32', V(t), V(g), V(sw))
        e.valu('v_lshlrev_b32', V(t), '4', V(t))
        e.valu('v_lshl_add_u32', V(t), V(q), '7', V(t))
        e.valu('v_add_u32', V(self.aX[0]), str(XBASE), V(t))
        e.valu('v_xor_b32', V(self.aX[1]), '64', V(self.aX[0]))

    def setup_attn_addr(self):
        e = self.e
        self.setup_tr_addr(self.aV, False)
        self.vslot = 0
        q, g, sw, t, u = [self.KF[0] + i for i in range(5)]
        self.lane_fields(q, g)
        e.valu('v_and_b32', V(sw), '6', V(q))
        e.valu('v_xor_b32', V(t), V(g), V(sw))
        e.valu('v_lshlrev_b32', V(t), '4', V(t))
        e.valu('v_and_b32', V(u), '7', V(q))
        e.valu('v_lshl_add_u32', V(t), V(u), '7', V(t))
        e.valu('v_lshrrev_b32', V(u), '3', V(q))
        e.valu('v_mul_u32_u24', V(u), '3072', V(u))
        e.salu('s_mul_i32', S(self.st0), S(self.sS), '6144')
        e.salu('s_add_u32', S(self.st0), S(self.st0), str(KR))
        e.valu('v_add3_u32', V(self.aK[0]), V(t), V(u), S(self.st0))
        e.valu('v_xor_b32', V(self.aK[1]), '64', V(self.aK[0]))

    def set_vslot(self, slot):
        e = self.e
        d = slot - self.vslot
        if d:
            for dt in range(3):
                if d > 0:
                    e.valu('v_add_u32', V(self.aV[dt]), str(d), V(self.aV[dt]))
                else:
                    e.valu('v_subrev_u32', V(self.aV[dt]), str(-d), V(self.aV[dt]))
            self.vslot = slot

    def seg_q(self, c):
        e = self.e
        nq = self.nq
        e.comment('---- Q seg %d' % c)
        if c == 0:
            self.setup_qproj_addr()
            t = self.KF[0]
            e.valu('v_mov_b32', V(t), '0xff800000')
            e.valu('v_mov_b32', V(t + 1), '0xff800000')
            e.valu('v_lshlrev_b32', V(t + 2), '3', V(self.vLane))
            e.valu('v_add_u32', V(t + 2), str(SMM), V(t + 2))
            for k in range(3):
                e.ds_write('ds_write_b64', V(t + 2), V(t, 2), off=512 * k)
        slot = VW + (c % 3) * TILE
        xo = self.xbuf(c) - XBASE
        WF = [self.OA, self.OA + 12]
        XF = [self.OA + 24, self.OA + 28, self.OA + 32]
        dm = []
        if c + 2 <= 9:
            dm += self.dma_tile('W', c + 2)
        xs = {0: 1, 1: 3, 2: 4, 3: 5, 4: 6, 5: 7, 7: 8, 8: 9}
        if c in xs:
            dm += self.dma_x_joined(xs[c])
        if c == K0SEG:
            dm += self.dma_tile('K', 0)
        if c == K1SEG:
            dm += self.dma_tile('K', 1)
        if c + 2 > 9:
            dm += self.dma_tile('V', c - 8)
        main = []

        def ldw(ks, dt):
            def f():
                e.ds_read('ds_read_b64_tr_b16', V(WF[ks] + dt * 4, 2), V(self.aW[dt]), off=slot + ks * 12288)
                e.ds_read('ds_read_b64_tr_b16', V(WF[ks] + dt * 4 + 2, 2), V(self.aW[dt]), off=slot + ks * 12288 + 512)
            return f

        def ldx(idx):
            ks, iq = divmod(idx, nq)

            def f():
                e.ds_read('ds_read_b128', V(XF[idx % 3], 4), V(self.aX[ks]), off=xo + self.qts[iq] * 2048)
            return f
        for dt in range(3):
            main.append(('o', ldw(0, dt)))
        for idx in range(3):
            main.append(('o', ldx(idx)))
        for dt in range(3):
            main.append(('o', ldw(1, dt)))
        for idx in range(2 * nq):
            ks, iq = divmod(idx, nq)
            for dt in range(3):
                def f(ks=ks, iq=iq, dt=dt, idx=idx):
                    a = self.acc(iq, dt)
                    e.mfma(V(a, 4), V(WF[ks] + dt * 4, 4), V(XF[idx % 3], 4), '0' if (c == 0 and ks == 0) else V(a, 4))
                main.append(('m', f))
            if idx + 3 < 2 * nq:
                main.append(('o', ldx(idx + 3)))
        weave(e, main, [(0, len(dm), dm)])
        if c < 9:
            e.need([('W', c + 1, False), ('x', c + 1, False)])
            e.barrier()
            self.stamp()

    def exchange(self):
        e = self.e
        nq = self.nq
        for iq in range(nq):
            for dt in range(3):
                a = self.acc(iq, dt)
                e.valu('v_cvt_pk_bf16_f32', V(a), V(a), V(a + 1))
                e.valu('v_cvt_pk_bf16_f32', V(a + 1), V(a + 2), V(a + 3))
        q, g, base = self.KF[0], self.KF[0] + 1, self.KF[0] + 2
        aQw = [self.KF[0] + 3, self.KF[0] + 4, self.KF[0] + 5]
        aQr = self.KF[0] + 6
        self.lane_fields(q, g)
        e.valu('v_mul_u32_u24', V(base), '208', V(q))
        e.valu('v_add_u32', V(base), str(PX), V(base))
        e.valu('v_lshl_add_u32', V(aQr), V(g), '4', V(base))
        e.valu('v_lshl_add_u32', V(base), V(g), '3', V(base))
        for dt in range(3):
            e.salu('s_sub_u32', S(self.st0), S(self.sT[dt]), '6')
            e.salu('s_cmp_ge_u32', None, S(self.sT[dt]), '6')
            e.salu('s_cselect_b32', S(self.st0), S(self.st0), S(self.sT[dt]))
            e.salu('s_lshl_b32', S(self.st0), S(self.st0), '5')
            e.valu('v_add_u32', V(aQw[dt]), S(self.st0), V(base))

        def wr_block(lab, ge):
            e.salu('s_cmp_ge_u32', None, S(self.sS), '2')
            e.raw('    s_cbranch_scc%d %s' % (0 if ge else 1, lab))
            for iq in range(nq):
                for dt in range(3):
                    e.ds_write('ds_write_b64', V(aQw[dt]), V(self.acc(iq, dt), 2), off=self.qts[iq] * 3328)
            e.wait_lds()
            e.label(lab)
            e.flush_hazards()
        e.barrier()
        for f in self.dma_tile('V', 2):
            f()
        wr_block('L_exA_%d' % self.g, False)
        e.barrier()
        self.stamp()
        for iq in range(nq):
            for ks in range(3):
                e.ds_read('ds_read_b128', V(self.qf(iq, ks), 4), V(aQr), off=self.qts[iq] * 3328 + ks * 64)
        e.barrier()
        self.stamp()
        wr_block('L_exB_%d' % self.g, True)
        e.need([('K', 0, False)])
        e.barrier()
        self.stamp()
        for iq in range(nq):
            for ks in range(3):
                e.ds_read('ds_read_b128', V(self.qf(iq, 3 + ks), 4), V(aQr), off=self.qts[iq] * 3328 + ks * 64)
        self.setup_attn_addr()
        for idx in range(5):
            e.valu('v_mov_b32', V(self.mreg(1, idx)), '0xff800000')
            e.valu('v_mov_b32', V(self.l + idx), '0')

    def seg_a(self, j):
        e = self.e
        nq, np_ = self.nq, self.np
        doB = 0 <= j <= 7
        doC = 1 <= j <= 8
        doA = -1 <= j <= 6
        e.comment('---- attn seg %d' % j)
        dm = []
        dm2 = []
        if 0 <= j <= 5:
            dm += self.dma_tile('K', j + 2)
        if NOMID:
            if 2 <= j <= 6:
                dm += self.dma_tile('V', j + 1)
            if USE_PF and j == PFSEG + 1:
                dm += self.l2_prefetch()
            if j == 7:
                dm += self.dma_tile('W', 0, True)
            if j == 8:
                dm += self.dma_tile('W', 1, True)
        else:
            if 1 <= j <= 5:
                dm2 += self.dma_tile('V', j + 2)
            if USE_PF and j == PFSEG:
                dm2 += self.l2_prefetch()
            if j == 6:
                dm2 += self.dma_tile('W', 0, True)
            if j == 7:
                dm2 += self.dma_tile('W', 1, True)
        if j == 7 and K0SEG < 0:
            dm += self.dma_tile('K', 0, True)
        if j == 8:
            dm += self.dma_x_joined(0)
            dm += self.dma_x_joined(2)
        mid = 1 <= j <= 7 and not NOMID
        new, old = (j & 1), ((j + 1) & 1)
        nX = (nq + 1) // 2 if (doA and doB and os.environ.get('SPLIT')) else nq
        sM = 76
        fS, fBx, fBy = [], [], []
        if doB:
            mo = (j & 1) * 768
            e.ds_read('ds_read_b32', V(self.m1[new]), V(self.aM), off=mo + (3 + self.rt0) * 4)
            e.ds_read('ds_read_b128', V(self.mq[new], 4), V(self.aM), off=mo + (4 + self.rt0) * 4)
            R5 = range(5)
            for idx in R5:
                fS.append(lambda idx=idx: e.valu('v_mul_f32', V(self.mreg(new, idx)), S(self.sC), V(self.mreg(new, idx))))
            for idx in R5:
                fS.append(lambda idx=idx: e.valu('v_sub_f32', V(self.al + idx), V(self.mreg(new, idx)), V(self.mreg(old, idx))))
            for idx in R5:
                fS.append(lambda idx=idx: e.valu('v_cmp_lt_f32', S(sM + 2 + 2 * idx, 2), '4.0', V(self.al + idx)))
            for idx in R5:
                fS.append(lambda idx=idx: e.valu('v_cndmask_b32', V(self.mreg(new, idx)), V(self.mreg(old, idx)), V(self.mreg(new, idx)), S(sM + 2 + 2 * idx, 2)))

            def fbr():
                e.salu('s_or_b64', S(sM, 2), S(sM + 2, 2), S(sM + 4, 2))
                e.salu('s_or_b64', S(sM + 6, 2), S(sM + 6, 2), S(sM + 8, 2))
                e.salu('s_or_b64', S(sM, 2), S(sM, 2), S(sM + 10, 2))
                e.salu('s_or_b64', S(sM, 2), S(sM, 2), S(sM + 6, 2))
                lab = 'L_nl_%d_%d' % (self.g, j)
                e.raw('    s_cbranch_scc0 %s' % lab)
                e.cond_begin()
                for idx in R5:
                    e.valu('v_sub_f32', V(self.al + idx), V(self.mreg(old, idx)), V(self.mreg(new, idx)))
                for idx in R5:
                    e.valu('v_exp_f32', V(self.al + idx), V(self.al + idx))
                for iq in range(nq):
                    idx = self.qts[iq] - self.rt0
                    e.valu('v_mul_f32', V(self.l + idx), V(self.al + idx), V(self.l + idx))
                e.cond_end(lab)
            fS.append(fbr)

            def b_ops(tiles):
                fl = []
                for iq in tiles:
                    idx = self.qts[iq] - self.rt0
                    s0 = self.ss(iq)
                    for i in range(4):
                        fl.append(lambda s0=s0, i=i, idx=idx: e.valu('v_fma_f32', V(s0 + i), V(s0 + i), S(self.sC), '-' + V(self.mreg(new, idx))))
                for iq in tiles:
                    s0 = self.ss(iq)
                    for i in range(4):
                        fl.append(lambda s0=s0, i=i: e.valu('v_exp_f32', V(s0 + i), V(s0 + i)))
                for iq in tiles:
                    idx = self.qts[iq] - self.rt0
                    s0 = self.ss(iq)
                    lr = self.l + idx
                    fl.append(lambda s0=s0, lr=lr: e.valu('v_add_f32', V(lr), V(lr), V(s0)))
                    fl.append(lambda s0=s0: e.valu('v_add_f32', V(self.t0), V(s0 + 1), V(s0 + 2)))
                    fl.append(lambda s0=s0, lr=lr: e.valu('v_add_f32', V(lr), V(lr), V(s0 + 3)))
                    fl.append(lambda s0=s0: e.valu('v_cvt_pk_bf16_f32', V(s0), V(s0), V(s0 + 1)))
                    fl.append(lambda lr=lr: e.valu('v_add_f32', V(lr), V(lr), V(self.t0)))
                    fl.append(lambda s0=s0: e.valu('v_cvt_pk_bf16_f32', V(s0 + 1), V(s0 + 2), V(s0 + 3)))
                    fl.append(lambda s0=s0, iq=iq: e.ds_write('ds_write_b64', V(self.aPw), V(s0, 2), off=(j & 1) * PXB + self.qts[iq] * 2048))
                return fl
            fBx = b_ops(range(nX))
            fBy = b_ops(range(nX, nq))
        if NOSM:
            fS, fBx, fBy = [], [], []
        fB = fS + fBx
        mainC = []
        kslot = ((j + 1) & 1) * TILE
        passes = [list(range(nX)), list(range(nX, nq))] if nX < nq else [list(range(nq))]
        kseq = [(p, ks) for p in range(len(passes)) for ks in range(6)]
        KBUF = [self.KF[0], self.KF[1], self.PF[0], self.PF[1], self.PF[2]]

        def ldk(n):
            p, ks = kseq[n]

            def f():
                e.ds_read('ds_read_b128', V(KBUF[n % 5], 4), V(self.aK[ks & 1]), off=kslot + (ks >> 1) * 1024)
            return f
        if doC:
            self.set_vslot(VW + ((10 + j - 1) % 3) * TILE)
            pbuf = ((j - 1) & 1) * PXB

            def ldv(k, dt):
                def f():
                    e.ds_read('ds_read_b64_tr_b16', V(self.VF[dt], 2), V(self.aV[dt]), off=(4 * k) * 3072)
                    e.ds_read('ds_read_b64_tr_b16', V(self.VF[dt] + 2, 2), V(self.aV[dt]), off=(4 * k + 2) * 3072)
                return f

            def ldp(idx):
                k, ip = divmod(idx, np_)

                def f():
                    e.ds_read('ds_read_b128', V(self.PF[idx % 3], 4), V(self.aP), off=pbuf + (self.pts[ip] * 2 + k) * 1024)
                return f
            for dt in range(3):
                mainC.append(('o', ldv(0, dt)))
            for idx in range(3):
                mainC.append(('o', ldp(idx)))
            for idx in range(2 * np_):
                k, ip = divmod(idx, np_)
                for dt in range(3):
                    def f(k=k, ip=ip, dt=dt, idx=idx):
                        o = self.oa(ip, dt)
                        e.mfma(V(o, 4), V(self.VF[dt], 4), V(self.PF[idx % 3], 4), '0' if (j == 1 and k == 0) else V(o, 4))
                    mainC.append(('m', f))
                    if k == 0 and ip == np_ - 1:
                        mainC.append(('o', ldv(1, dt)))
                if idx + 3 < 2 * np_:
                    mainC.append(('o', ldp(idx + 3)))
            weave(e, mainC, [(0, 6 * np_ - 2, fB), dpos(self.g, len(dm), 6 * np_, 1) + (dm,)])
            dm = []
        else:
            if doA:
                ldk(0)()
                ldk(1)()
            for f in fB:
                f()
        if j == 7:
            self.l_exchange()
        if mid:
            if doA:
                e.need([('K', j + 1, False)])
            e.barrier()
            self.stamp()
            if doA:
                ldk(0)()
                ldk(1)()
        elif doC and doA:
            ldk(0)()
            ldk(1)()
        dm += dm2
        if doA:
            for n in range(2, 5):
                ldk(n)()
        if doB and j >= 1 and not NOSM:
            lab = 'L_nr_%d_%d' % (self.g, j)
            e.salu('s_cmp_eq_u64', None, S(sM, 2), '0')
            e.raw('    s_cbranch_scc1 %s' % lab)
            e.cond_begin()
            for ip in range(np_):
                idx = self.pts[ip] - self.rt0
                for dt in range(3):
                    for i in range(4):
                        o = self.oa(ip, dt) + i
                        e.valu('v_mul_f32', V(o), V(self.al + idx), V(o))
            e.cond_end(lab)
        if doA:
            mo = ((j + 1) & 1) * 768

            def mx(iq):
                def f():
                    s0 = self.ss(iq)
                    t = self.t2 if iq & 1 else self.t1
                    e.valu('v_max3_f32', V(t), V(s0), V(s0 + 1), V(s0 + 2))
                    e.valu('v_max_f32', V(t), V(t), V(s0 + 3))
                    e.ds_write(os.environ.get('MAXOP', 'ds_max_f32'), V(self.aM), V(t), off=mo + (3 + self.qts[iq]) * 4)
                return f
            mainA = []
            for n, (p, ks) in enumerate(kseq):
                for iq in passes[p]:
                    def f(n=n, ks=ks, iq=iq):
                        s0 = self.ss(iq)
                        e.mfma(V(s0, 4), V(KBUF[n % 5], 4), V(self.qf(iq, ks), 4), '0' if ks == 0 else V(s0, 4))
                    mainA.append(('m', f))
                if n + 5 < len(kseq):
                    mainA.append(('o', ldk(n + 5)))
            nm = 6 * nq
            fills = [dpos(self.g, len(dm), nm, 2) + (dm,)]
            if len(passes) == 2:
                fills.append((0, 6 * nX - 2, fBy))
                fills.append((6 * nX + 3, nm - 1, [mx(iq) for iq in passes[0]]))
            weave(e, mainA, fills)
            dm = []
            for iq in passes[-1]:
                mx(iq)()
        else:
            for f in dm:
                f()
        if j == 8:
            self.epilogue()
        nd = []
        if j + 1 <= (6 if NOMID else 0):
            nd.append(('K', j + 2, False))
        if 1 <= j + 1 <= 8:
            nd.append(('V', j, False))
        if j == 8:
            nd = [('W', 0, True), ('x', 0, False)]
        e.need(nd)
        e.barrier()
        self.stamp()

    def l_exchange(self):
        e = self.e
        idxs = [qt - self.rt0 for qt in self.qts]
        q, g, ad = self.QF, self.QF + 1, self.QF + 2
        self.lane_fields(q, g)
        pack = idxs[-4:]
        a, b, c, d = [self.l + i for i in pack]
        e.perm('v_permlane16_swap_b32', V(a), V(b))
        e.perm('v_permlane16_swap_b32', V(c), V(d))
        e.valu('v_add_f32', V(a), V(a), V(b))
        e.valu('v_add_f32', V(c), V(c), V(d))
        e.perm('v_permlane32_swap_b32', V(a), V(c))
        e.valu('v_add_f32', V(a), V(a), V(c))
        rtp = pack[0] + self.rt0
        e.salu('s_lshl_b32', S(self.st0), S(self.sS), '2')
        e.salu('s_add_u32', S(self.st0), S(self.st0), str(SML))
        e.valu('v_lshlrev_b32', V(ad), '4', V(q))
        e.valu('v_add_u32', V(ad), S(self.st0), V(ad))
        e.valu('v_lshl_add_u32', V(ad + 1), V(g), '8', V(ad))
        e.ds_write('ds_write_b32', V(ad + 1), V(a), off=rtp * 256)
        if len(idxs) == 5:
            x = self.l + idxs[0]
            y = self.QF + 5
            e.valu('v_mov_b32', V(y), V(x))
            e.perm('v_permlane16_swap_b32', V(x), V(y))
            e.valu('v_add_f32', V(x), V(x), V(y))
            e.valu('v_mov_b32', V(y), V(x))
            e.perm('v_permlane32_swap_b32', V(x), V(y))
            e.valu('v_add_f32', V(x), V(x), V(y))
            e.ds_write('ds_write_b32', V(ad), V(x), off=(idxs[0] + self.rt0) * 256)

    def epilogue(self):
        e = self.e
        np_ = self.np
        q, ad, vo = self.QF, self.QF + 1, self.QF + 2
        e.valu('v_and_b32', V(q), '15', V(self.vLane))
        e.valu('v_lshlrev_b32', V(ad), '4', V(q))
        e.valu('v_add_u32', V(ad), str(SML), V(ad))
        e.valu('v_lshlrev_b32', V(vo), '4', V(self.vLane))
        L = self.QF + 4
        for ip in range(np_):
            e.ds_read('ds_read_b128', V(L + ip * 4, 4), V(ad), off=self.pts[ip] * 256)
        for ip in range(np_):
            x = L + ip * 4
            e.valu('v_add_f32', V(x), V(x), V(x + 1))
            e.valu('v_add_f32', V(x + 2), V(x + 2), V(x + 3))
            e.valu('v_add_f32', V(x), V(x), V(x + 2))
            e.valu('v_rcp_f32', V(x), V(x))
        for ip in range(np_):
            x = L + ip * 4
            o = self.oa(ip, 0)
            for i in range(12):
                e.valu('v_mul_f32', V(o + i), V(x), V(o + i))
            for i in range(6):
                e.valu('v_cvt_pk_bf16_f32', V(o + i), V(o + 2 * i), V(o + 2 * i + 1))
            rt = self.pts[ip]
            e.salu('s_add_u32', S(self.st0), S(self.sOB), S(self.sPo))
            e.salu('s_add_u32', S(self.st1), S(self.sOB), S(self.sSo))
            if rt >> 2:
                e.salu('s_add_u32', S(self.st0), S(self.st0), str((rt >> 2) * 4096))
                e.salu('s_add_u32', S(self.st1), S(self.st1), str((rt >> 2) * 4096))
            e.bstore('buffer_store_dwordx4', V(o, 4), V(vo), S(self.sO, 4), S(self.st0), off=(rt & 3) * 1024, tag='ost')
            e.bstore('buffer_store_dwordx2', V(o + 4, 2), V(vo), S(self.sO, 4), S(self.st1), off=(rt & 3) * 1024, tag='ost')

    def stamp(self):
        if not self.dbg:
            return
        e = self.e
        e.raw('    s_memtime s[70:71]')
        e.raw('    s_waitcnt lgkmcnt(0)')
        e.lds = []
        e.valu('v_mov_b32', V(self.t1), 's70')
        e.raw('    buffer_store_dword %s, off, s[%d:%d], s72' % (V(self.t1), self.sO, self.sO + 3))
        e.vm.append(('stamp', set()))
        e.pos += 3
        e.salu('s_add_u32', 's72', 's72', '4')

    def rstamp(self):
        if not self.dbg:
            return
        e = self.e
        e.raw('    s_memrealtime s[70:71]')
        e.raw('    s_waitcnt lgkmcnt(0)')
        e.lds = []
        e.valu('v_mov_b32', V(self.t1), 's70')
        e.raw('    buffer_store_dword %s, off, s[%d:%d], s72' % (V(self.t1), self.sO, self.sO + 3))
        e.vm.append(('stamp', set()))
        e.pos += 3
        e.salu('s_add_u32', 's72', 's72', '4')

    def head(self):
        for c in range(10):
            self.seg_q(c)
        self.exchange()
        for j in range(-1, 9):
            self.seg_a(j)

    def retag(self):
        self.e.vm = [((t[0], t[1], False) if isinstance(t, tuple) else t, d) for t, d in self.e.vm]

    def body(self):
        e = self.e
        g = self.g
        ln, t, u = self.vLane, self.t0, self.t1
        e.valu('v_and_b32', V(ln), '63', 'v0')
        e.valu('v_lshrrev_b32', V(t), '3', V(ln))
        e.valu('v_lshrrev_b32', V(u), '4', V(ln))
        e.valu('v_lshlrev_b32', V(u), '1', V(u))
        e.valu('v_and_b32', V(self.t2), '7', V(ln))
        e.valu('v_xor_b32', V(u), V(u), V(self.t2))
        e.valu('v_lshlrev_b32', V(u), '4', V(u))
        e.valu('v_mul_u32_u24', V(self.vKV), '384', V(t))
        e.valu('v_add3_u32', V(self.vKV), V(self.vKV), V(u), S(self.sW3))
        e.salu('s_and_b32', S(self.st0), S(self.sWv), '1')
        e.salu('s_lshl_b32', S(self.st0), S(self.st0), '2')
        e.valu('v_bfe_u32', V(u), V(ln), '4', '1')
        e.valu('v_lshlrev_b32', V(u), '1', V(u))
        e.valu('v_or_b32', V(u), S(self.st0), V(u))
        e.valu('v_xor_b32', V(u), V(u), V(self.t2))
        e.valu('v_lshlrev_b32', V(u), '4', V(u))
        e.valu('v_mul_u32_u24', V(self.vW), '12288', V(t))
        e.salu('s_mul_i32', S(self.st0), S(self.sWv), '98304')
        e.valu('v_add3_u32', V(self.vW), V(self.vW), V(u), S(self.st0))
        e.salu('s_mul_i32', S(self.st0), S(self.sWv), '9')
        e.valu('v_lshrrev_b32', V(u), '4', V(ln))
        e.valu('v_add_u32', V(u), S(self.st0), V(u))
        e.valu('v_and_b32', V(u), '3', V(u))
        e.valu('v_lshlrev_b32', V(u), '1', V(u))
        e.valu('v_xor_b32', V(u), V(u), V(self.t2))
        e.valu('v_lshlrev_b32', V(u), '4', V(u))
        e.valu('v_mul_u32_u24', V(self.vX), '1280', V(t))
        e.salu('s_mul_i32', S(self.st0), S(self.sWv), '23040')
        e.valu('v_add3_u32', V(self.vX), V(self.vX), V(u), S(self.st0))
        e.valu('v_lshlrev_b32', V(t), '4', V(ln))
        e.valu('v_add_u32', V(self.aP), str(PX), V(t))
        e.salu('s_and_b32', S(self.st0), S(self.sS), '1')
        e.salu('s_lshl_b32', S(self.st0), S(self.st0), '3')
        e.salu('s_lshr_b32', S(self.st1), S(self.sS), '1')
        e.salu('s_lshl_b32', S(self.st1), S(self.st1), '10')
        e.salu('s_add_u32', S(self.st0), S(self.st0), S(self.st1))
        e.valu('v_add_u32', V(self.aPw), S(self.st0), V(self.aP))
        e.valu('v_and_b32', V(t), '15', V(ln))
        e.valu('v_mul_u32_u24', V(t), '48', V(t))
        e.valu('v_add_u32', V(self.aM), str(SMM), V(t))
        for f in self.dma_tile('W', 0) + self.dma_tile('W', 1) + self.dma_x_joined(0) + self.dma_x_joined(2) + (self.dma_tile('K', 0) if K0SEG < 0 else []):
            f()
        self.l2_prefetch()
        if os.environ.get('PFO', 'start') == 'start':
            self.fo()
        e.wait_vm0()
        e.barrier()
        self.rstamp()
        self.stamp()
        e.wait_vm0()
        save = (e.lines, e.hist, e.pos, e.lds, e.vm, self.vslot)
        e.lines, e.hist, e.lds, e.vm = [], [], [], []
        self.head()
        self.retag()
        inq = list(e.vm)
        e.lines, e.hist, e.pos, e.lds, e.vm, self.vslot = save
        e.vm = list(inq)
        e.flush_hazards()
        e.label('L_head_%d' % g)
        self.head()
        self.retag()
        assert [t for t, _ in e.vm] == [t for t, _ in inq], (e.vm, inq)
        e.salu('s_mov_b32', S(self.sBH), S(self.sBHn))
        e.salu('s_mov_b32', S(self.sHW), S(self.sHWn))
        e.salu('s_add_u32', S(self.sBHn), S(self.sBHn), '196608')
        e.salu('s_add_u32', S(self.sHWn), S(self.sHWn), '384')
        e.salu('s_add_u32', S(self.sOB), S(self.sOB), str(6 * 147456))
        e.salu('s_add_u32', S(self.sCnt), S(self.sCnt), '1')
        e.flush_hazards()
        e.salu('s_cmp_lt_u32', None, S(self.sCnt), '4')
        e.raw('    s_cbranch_scc1 L_head_%d' % g)
        self.rstamp()
        if os.environ.get('PFO') == 'end':
            self.fo()
        e.raw('    s_endpgm')


def srd(e, d, lo, hi, nbytes):
    e.salu('s_mov_b32', S(d), S(lo))
    e.salu('s_and_b32', S(d + 1), S(hi), '0xffff')
    e.salu('s_mov_b32', S(d + 2), str(nbytes))
    e.salu('s_mov_b32', S(d + 3), '0x00020000')


def gen_k1(dbg=False):
    e = Em()
    e.k1 = True
    if NOMFMA:
        e.mfma = lambda *a: None
    if os.environ.get('NODMA'):
        e.dma = lambda *a, **k: None
    if os.environ.get('NOLDSR'):
        e.ds_read = lambda *a, **k: None
    k = K1
    e.raw('.p2align 8')
    e.raw('attn_kernel:')
    e.salu('s_cmp_ge_u32', None, 's2', '256')
    e.raw('    s_cbranch_scc1 L_k1_exit')
    e.raw('    s_load_dwordx8 s[48:55], s[0:1], 0')
    e.raw('    s_load_dwordx8 s[56:63], s[0:1], 40')
    e.raw('    s_load_dwordx2 s[64:65], s[0:1], 96')
    e.raw('    s_load_dwordx2 s[94:95], s[0:1], 32')
    e.raw('    s_load_dwordx2 s[96:97], s[0:1], 72')
    e.salu('s_and_b32', 's3', 's2', '7')
    e.salu('s_lshr_b32', 's4', 's2', '3')
    e.salu('s_lshr_b32', 's5', 's3', '2')
    e.salu('s_and_b32', 's6', 's3', '3')
    e.salu('s_lshr_b32', 's7', 's6', '1')
    e.salu('s_lshl_b32', 's7', 's7', '3')
    e.salu('s_lshr_b32', 's66', 's4', '2')
    e.salu('s_add_u32', 's7', 's7', 's66')
    e.salu('s_and_b32', 's66', 's6', '1')
    e.salu('s_lshl_b32', 's66', 's66', '2')
    e.salu('s_and_b32', 's67', 's4', '3')
    e.salu('s_add_u32', 's66', 's66', 's67')
    e.salu('s_lshl_b32', 's66', 's66', '2')
    e.raw('    s_waitcnt lgkmcnt(0)')
    e.salu('s_cmp_eq_u32', None, 's5', '0')
    for i in range(8):
        e.salu('s_cselect_b32', S(48 + i), S(48 + i), S(56 + i))
    e.salu('s_cselect_b32', 's94', 's94', 's96')
    e.salu('s_cselect_b32', 's95', 's95', 's97')
    srd(e, 88, 94, 95, 7864320)
    srd(e, k.sX, 48, 49, 2949120)
    srd(e, k.sK, 50, 51, 100663296)
    srd(e, k.sVv, 52, 53, 100663296)
    srd(e, k.sW, 54, 55, 7864320)
    srd(e, k.sO, 64, 65, 440008704 if dbg else 56623104)
    e.valu('v_lshrrev_b32', 'v1', '6', 'v0')
    e.rfl(S(k.sWv), 'v1')
    e.salu('s_and_b32', S(k.sS), S(k.sWv), '3')
    e.salu('s_mul_i32', S(k.sW3), S(k.sWv), '3072')
    e.salu('s_mul_i32', S(k.sW2), S(k.sWv), '2304')
    e.salu('s_lshl_b32', 's67', 's7', '5')
    e.salu('s_add_u32', 's67', 's67', 's66')
    e.salu('s_mul_i32', S(k.sBH), 's67', '196608')
    e.salu('s_add_u32', S(k.sBHn), S(k.sBH), '196608')
    e.salu('s_mul_i32', S(k.sHW), 's66', '384')
    e.salu('s_add_u32', S(k.sHWn), S(k.sHW), '384')
    e.salu('s_mul_i32', S(k.sXB), 's7', '184320')
    e.salu('s_mul_i32', 's67', 's5', '192')
    e.salu('s_mul_i32', 's68', 's66', '6')
    e.salu('s_add_u32', 's67', 's67', 's68')
    e.salu('s_mul_i32', 's67', 's67', '144')
    e.salu('s_mul_i32', 's68', 's7', '9')
    e.salu('s_add_u32', 's67', 's67', 's68')
    e.salu('s_lshl_b32', S(k.sOB), 's67', '10')
    e.salu('s_mov_b32', S(k.sCnt), '0')
    e.salu('s_mov_b32', S(k.sC), f32hex(SCALE_C))
    e.salu('s_lshr_b32', 's67', 's4', '2')
    e.salu('s_mul_i32', 's67', 's67', '80')
    e.salu('s_mul_i32', 's68', S(k.sWv), '10')
    e.salu('s_add_u32', 's67', 's67', 's68')
    e.salu('s_mul_i32', 's74', 's67', '12288')
    e.salu('s_and_b32', 's67', 's4', '3')
    e.salu('s_mul_i32', 's67', 's67', '360')
    e.salu('s_mul_i32', 's68', S(k.sWv), '45')
    e.salu('s_add_u32', 's67', 's67', 's68')
    e.salu('s_lshl_b32', 's67', 's67', '7')
    e.salu('s_add_u32', 's75', 's67', S(k.sXB))
    e.salu('s_lshl_b32', 's67', 's7', '3')
    e.salu('s_lshr_b32', 's68', 's66', '2')
    e.salu('s_add_u32', 's67', 's67', 's68')
    e.salu('s_mul_i32', 's67', 's67', '61440')
    e.salu('s_mul_i32', 's68', S(k.sWv), '7680')
    e.salu('s_add_u32', 's92', 's67', 's68')
    e.salu('s_mul_i32', 's67', S(k.sS), '3')
    e.salu('s_and_b32', 's68', S(k.sS), '1')
    e.salu('s_add_u32', S(k.sT[0]), 's67', 's68')
    e.salu('s_add_u32', S(k.sT[1]), S(k.sT[0]), '1')
    e.salu('s_add_u32', S(k.sT[2]), 's67', '2')
    e.salu('s_cmp_eq_u32', None, 's68', '1')
    e.salu('s_cselect_b32', S(k.sT[2]), 's67', S(k.sT[2]))
    e.salu('s_lshr_b32', 's67', S(k.sT[0]), '1')
    e.salu('s_mul_i32', S(k.sPo), 's67', '147456')
    e.salu('s_lshr_b32', 's67', S(k.sT[2]), '1')
    e.salu('s_mul_i32', S(k.sSo), 's67', '147456')
    e.salu('s_and_b32', 's67', S(k.sT[2]), '1')
    e.salu('s_lshl_b32', 's67', 's67', '3')
    e.salu('s_add_u32', S(k.sSo), S(k.sSo), 's67')
    if dbg:
        e.salu('s_lshl_b32', 's72', 's2', '3')
        e.salu('s_add_u32', 's72', 's72', S(k.sWv))
        e.salu('s_lshl_b32', 's72', 's72', '10')
        e.salu('s_add_u32', 's72', 's72', str(64 << 20))
    e.salu('s_cmp_ge_u32', None, S(k.sWv), '4')
    e.raw('    s_cbranch_scc1 L_grp1')
    e.flush_hazards()
    K1(e, 0, dbg).body()
    e.label('L_grp1')
    if os.environ.get('PRIO'):
        e.raw('    s_setprio 1')
    e.flush_hazards()
    e.lds, e.vm = [], []
    K1(e, 1, dbg).body()
    e.label('L_k1_exit')
    e.raw('    s_endpgm')
    return e.text()


def gen_k2():
    e = Em()
    if os.environ.get('K2NOMFMA'):
        e.mfma = lambda *a: None
    NR, NC = 6, 8
    if os.environ.get('K2NOW'):
        e.dma = lambda *a, **k: None
    if os.environ.get('K2NOO'):
        e.bload = lambda *a, **k: None
    e.raw('.p2align 8')
    e.raw('oproj_kernel:')
    e.salu('s_cmp_ge_u32', None, 's2', '240')
    e.raw('    s_cbranch_scc1 L_k2_exit')
    e.raw('    s_load_dwordx2 s[4:5], s[0:1], 32')
    e.raw('    s_load_dwordx2 s[6:7], s[0:1], 72')
    e.raw('    s_load_dwordx2 s[8:9], s[0:1], 80')
    e.raw('    s_load_dwordx2 s[10:11], s[0:1], 96')
    sWo, sOw, sOut = 12, 16, 20
    sWv, sBlk, sMt, sNs, sO0, sO1, sWoff, sCnt, sLb, sOo, st = 24, 25, 26, 27, 28, 29, 31, 32, 33, 34, 35
    e.salu('s_and_b32', 's3', 's2', '7')
    e.salu('s_lshr_b32', 's36', 's2', '3')
    e.salu('s_lshr_b32', S(sBlk), 's3', '2')
    e.salu('s_and_b32', 's3', 's3', '3')
    e.salu('s_mul_i32', 's3', 's3', '6')
    e.salu('s_mul_i32', 's37', 's36', '13108')
    e.salu('s_lshr_b32', 's37', 's37', '16')
    e.salu('s_add_u32', S(sMt), 's3', 's37')
    e.salu('s_mul_i32', 's37', 's37', '5')
    e.salu('s_sub_u32', S(sNs), 's36', 's37')
    e.raw('    s_waitcnt lgkmcnt(0)')
    e.salu('s_cmp_eq_u32', None, S(sBlk), '0')
    e.salu('s_cselect_b32', 's4', 's4', 's6')
    e.salu('s_cselect_b32', 's5', 's5', 's7')
    srd(e, sWo, 4, 5, 7864320)
    srd(e, sOw, 10, 11, 56623104)
    srd(e, sOut, 8, 9, 5898240)
    e.valu('v_lshrrev_b32', 'v1', '6', 'v0')
    e.rfl(S(sWv), 'v1')
    OF = lambda stg, r: stg * 24 + r * 4
    WF = lambda buf, nt: 96 + buf * 32 + nt * 4
    vWo = [160, 161]
    aT = [162 + i for i in range(8)]
    vOo, vL, t0, t1, t2, t3 = 170, 171, 172, 173, 174, 175
    acc = lambda nt, r: (nt * NR + r) * 4
    e.valu('v_and_b32', V(vL), '63', 'v0')
    e.valu('v_lshlrev_b32', V(vOo), '4', V(vL))
    e.valu('v_lshrrev_b32', V(t0), '4', V(vL))
    e.valu('v_and_b32', V(t1), '15', V(vL))
    for p in range(2):
        e.valu('v_add_u32', V(t2), str(4 * p), V(t0))
        e.valu('v_lshlrev_b32', V(t2), '1', V(t2))
        e.valu('v_xor_b32', V(t2), V(t2), V(t1))
        e.valu('v_lshlrev_b32', V(t2), '4', V(t2))
        e.valu('v_mul_u32_u24', V(t3), '1280', V(t0))
        e.valu('v_add_u32', V(vWo[p]), V(t2), V(t3))
    e.salu('s_lshl_b32', S(sLb), S(sWv), '15')
    e.valu('v_lshrrev_b32', V(t0), '2', V(vL))
    e.valu('v_and_b32', V(t1), '7', V(t0))
    e.valu('v_lshlrev_b32', V(t0), '8', V(t0))
    e.valu('v_and_b32', V(t2), '3', V(vL))
    e.valu('v_lshl_add_u32', V(t0), V(t2), '3', V(t0))
    e.valu('v_add_u32', V(t0), S(sLb), V(t0))
    for nt in range(NC):
        e.valu('v_xor_b32', V(t2), str(nt), V(t1))
        e.valu('v_lshl_add_u32', V(aT[nt]), V(t2), '5', V(t0))
    e.salu('s_mul_i32', S(st), S(sBlk), '192')
    e.salu('s_mul_i32', 's36', S(sWv), '48')
    e.salu('s_add_u32', S(st), S(st), 's36')
    e.salu('s_mul_i32', S(st), S(st), '144')
    e.salu('s_mul_i32', 's37', S(sMt), '6')
    e.salu('s_add_u32', S(st), S(st), 's37')
    e.salu('s_lshl_b32', S(sO0), S(st), '10')
    e.salu('s_add_u32', S(sO1), S(sO0), '4096')
    e.salu('s_mul_i32', S(sWoff), 's36', '40960')
    e.salu('s_lshl_b32', S(st), S(sNs), '8')
    e.salu('s_add_u32', S(sWoff), S(sWoff), S(st))
    e.salu('s_mul_i32', S(sOo), S(sMt), str(96 * 2560))
    e.salu('s_mul_i32', 's37', S(sBlk), '1280')
    e.salu('s_add_u32', S(sOo), S(sOo), 's37')
    e.salu('s_add_u32', S(sOo), S(sOo), S(st))
    e.salu('s_mov_b32', S(sCnt), '0')

    STG = lambda u, i: 192 + (u & 1) * 32 + i * 4
    aSt = 179

    def issue(u):
        for i in range(8):
            if os.environ.get('K2LIN'):
                if i:
                    e.salu('s_add_u32', S(st), S(sWoff), str(1024 * i))
                e.bload('buffer_load_dwordx4', A(STG(u, i), 4), V(vOo), S(sWo, 4), S(st if i else sWoff), tag=('w', u % 4))
                continue
            if i:
                e.salu('s_add_u32', S(st), S(sWoff), str(5120 * i))
            e.bload('buffer_load_dwordx4', A(STG(u, i), 4), V(vWo[i & 1]), S(sWo, 4), S(st if i else sWoff), tag=('w', u % 4))
        e.salu('s_add_u32', S(sWoff), S(sWoff), '40960')

    def issue_o(u):
        for r in range(NR):
            e.bload('buffer_load_dwordx4', V(OF(u % 4, r), 4), V(vOo), S(sOw, 4), S([sO0, sO1][r >> 2]), off=(r & 3) * 1024, tag=('o', u % 4))
        e.salu('s_add_u32', S(sO0), S(sO0), '147456')
        e.salu('s_add_u32', S(sO1), S(sO1), '147456')

    def stw(u):
        for i in range(8):
            e.ds_write('ds_write_b128', V(aSt), A(STG(u, i), 4), off=(u & 1) * 8192 + i * 1024)

    def ldw(u):
        for nt in range(NC):
            e.ds_read('ds_read_b64_tr_b16', V(WF(u & 1, nt), 2), V(aT[nt]), off=(u & 1) * 8192)
            e.ds_read('ds_read_b64_tr_b16', V(WF(u & 1, nt) + 2, 2), V(aT[nt]), off=(u & 1) * 8192 + 4096)

    e.valu('v_add_u32', V(aSt), S(sLb), V(vOo))
    K2DBG = os.environ.get('K2DBG')

    def kst(i):
        if not K2DBG:
            return
        e.raw('    s_memtime s[40:41]')
        e.raw('    s_waitcnt lgkmcnt(0)')
        e.lds = []
        e.valu('v_mov_b32', V(t3), 's40')
        e.salu('s_lshl_b32', 's42', 's2', '2')
        e.salu('s_add_u32', 's42', 's42', S(sWv))
        e.salu('s_lshl_b32', 's42', 's42', '5')
        e.salu('s_add_u32', 's42', 's42', str((70 << 20) + 4 * i))
        e.raw('    buffer_store_dword %s, off, s[44:47], s42' % V(t3))
        e.vm.append(('stamp', set()))
    if K2DBG:
        srd(e, 44, 10, 11, 440008704)
    kst(0)
    issue_o(0)
    issue(0)
    issue_o(1)
    issue(1)
    issue_o(2)
    for a in range(NR * NC * 4):
        e.valu('v_accvgpr_write_b32', A(a), '0')
    stw(0)
    ldw(0)

    def body():
        for u in range(4):
            issue(u + 2)
            issue_o(u + 3)
            n = 0
            for r in range(NR):
                for nt in range(NC):
                    e.mfma(A(acc(nt, r), 4), V(WF(u & 1, nt), 4), V(OF(u % 4, r), 4), A(acc(nt, r), 4))
                    n += 1
                    if n == 16:
                        stw(u + 1)
                    if n == 28:
                        ldw(u + 1)
    save = (e.lines, e.hist, e.pos, e.lds, e.vm)
    vm_in = list(e.vm)
    e.lines = []
    body()
    vm_out = list(e.vm)
    e.lines, e.hist, e.pos, e.lds, e.vm = save
    if not os.environ.get('K2NOMFMA'):
        assert [t for t, _ in vm_out] == [t for t, _ in vm_in], (vm_out, vm_in)
    kst(1)
    if K2DBG:
        e.vm = list(vm_in)
    e.flush_hazards()
    e.label('L_k2_loop')
    body()
    e.salu('s_add_u32', S(sCnt), S(sCnt), '1')
    e.salu('s_cmp_lt_u32', None, S(sCnt), '12')
    e.raw('    s_cbranch_scc1 L_k2_loop')
    e.flush_hazards()
    kst(2)
    e.wait_vm0()
    e.barrier()
    kst(3)
    tiles = [(nt, r) for nt in range(NC) for r in range(NR)]
    rounds = [tiles[:24], tiles[24:]]
    aR, aRw, vS = 176, 177, 178
    e.valu('v_lshlrev_b32', V(aR), '4', V(vL))
    e.salu('s_mul_i32', S(st), S(sWv), '24576')
    e.valu('v_add_u32', V(aRw), S(st), V(aR))
    e.valu('v_add_u32', V(t2), '49152', V(aR))
    e.valu('v_and_b32', V(t0), '15', V(vL))
    e.valu('v_mul_u32_u24', V(t0), '2560', V(t0))
    e.valu('v_lshrrev_b32', V(t1), '4', V(vL))
    e.valu('v_lshl_add_u32', V(vS), V(t1), '3', V(t0))
    for ri, rd in enumerate(rounds):
        for ti, (nt, r) in enumerate(rd):
            e.ds_write('ds_write_b128', V(aRw), A(acc(nt, r), 4), off=ti * 1024)
        e.barrier()
        for w in range(4):
            lab = 'L_k2_r%d_w%d' % (ri, w)
            e.salu('s_cmp_lg_u32', None, S(sWv), str(w))
            e.raw('    s_cbranch_scc1 %s' % lab)
            mine = [(ti, t) for ti, t in enumerate(rd) if ti % 4 == w]
            for n, (ti, (nt, r)) in enumerate(mine):
                b = n * 16
                for p in range(4):
                    ad, of = (aR, p * 24576 + ti * 1024) if p < 2 else (t2, (p - 2) * 24576 + ti * 1024)
                    e.ds_read('ds_read_b128', V(b + p * 4, 4), V(ad), off=of)
            for n, (ti, (nt, r)) in enumerate(mine):
                b = n * 16
                for i in range(4):
                    e.valu('v_add_f32', V(b + i), V(b + i), V(b + 4 + i))
                    e.valu('v_add_f32', V(b + 8 + i), V(b + 8 + i), V(b + 12 + i))
                for i in range(4):
                    e.valu('v_add_f32', V(b + i), V(b + i), V(b + 8 + i))
                e.valu('v_cvt_pk_bf16_f32', V(b), V(b), V(b + 1))
                e.valu('v_cvt_pk_bf16_f32', V(b + 1), V(b + 2), V(b + 3))
                e.salu('s_add_u32', S(st), S(sOo), str(r * 40960 + nt * 32))
                e.bstore('buffer_store_dwordx2', V(b, 2), V(vS), S(sOut, 4), S(st), tag='out')
            e.wait_lds()
            e.label(lab)
            e.flush_hazards()
        if ri == 0:
            e.barrier()
    kst(4)
    e.label('L_k2_exit')
    e.raw('    s_endpgm')
    return e.text()


HEADER = open('cdna_kernels/%s.s.ref' % NAME).read().split('; Override launch')[0]


def kd(name, vgpr, acc, sgpr=102):
    return '''.amdhsa_kernel %s
  .amdhsa_next_free_vgpr %d
  .amdhsa_next_free_sgpr %d
  .amdhsa_accum_offset %d
  .amdhsa_group_segment_fixed_size 0
  .amdhsa_kernarg_size 104
  .amdhsa_user_sgpr_count 2
  .amdhsa_user_sgpr_kernarg_segment_ptr 1
  .amdhsa_system_sgpr_workgroup_id_x 1
.end_amdhsa_kernel
''' % (name, vgpr, sgpr, acc)


def main():
    out = HEADER
    out += '; @launch kernel=attn_kernel grid=(256,1,1) block=(512,1,1) lds=163840\n'
    out += '; @launch kernel=oproj_kernel grid=(240,1,1) block=(256,1,1) lds=131072\n'
    out += '.amdgcn_target "amdgcn-amd-amdhsa--gfx950"\n.text\n'
    out += '.globl attn_kernel\n.type attn_kernel,@function\n.globl oproj_kernel\n.type oproj_kernel,@function\n'
    out += gen_k1('dbg' in sys.argv)
    out += gen_k2()
    out += '.section .rodata,"a"\n.p2align 6\n'
    out += kd('attn_kernel', 256, 256)
    out += '.p2align 6\n'
    out += kd('oproj_kernel', 512, 256)
    dst = sys.argv[1] if len(sys.argv) > 1 else 'cdna_kernels/%s.s' % NAME
    open(dst, 'w').write(out)
    print('wrote', dst, len(out), 'bytes')


if __name__ == '__main__':
    main()
```
